```python
import torch

def _softmax(x, axis=-1):
    return torch.softmax(x, dim=axis)
def _gelu(x):
    return torch.nn.functional.gelu(x, approximate="tanh")
def _silu(x):
    return torch.nn.functional.silu(x)
def _sigmoid(x):
    return torch.sigmoid(x)
def _layernorm(x, axis=-1, eps=1e-5):
    m = x.mean(dim=axis, keepdim=True)
    v = x.var(dim=axis, keepdim=True, unbiased=False)
    return (x - m) / torch.sqrt(v + eps)
def _scatter_add(tgt, idx, src, axis=0):
    return tgt.clone().index_add_(axis, idx, src)
def _segment_sum(src, seg, n):
    out = torch.zeros((n,) + src.shape[1:], dtype=src.dtype)
    return out.index_add_(0, seg, src)
def _pad(x, pw):
    flat = tuple(v for pair in reversed(pw) for v in pair)
    return torch.nn.functional.pad(x, flat)

kernel_name = 'recurrent_scan__ssm_conv_s4d__moe_arch_mod__prompt'

def setup_inputs():

    _w = (lambda a: (lambda t: t.to(torch.bfloat16) if t.is_floating_point() else t)(torch.as_tensor(a)))
    def _A_setup():
        Bsz, L, D, N = 1, 2048, 512, 128
        return {
            "u": _w((lambda *s: torch.randn(*s, dtype=torch.bfloat16) * 0.05)(Bsz, L, D)),
            "log_A_real": _w((lambda *s: torch.randn(*s, dtype=torch.bfloat16) * 3.2)(D, N) * 0.5),
            "A_imag": _w((lambda *s: torch.randn(*s, dtype=torch.bfloat16) * 0.05)(D, N) * 3.14),
            "C_real": _w((lambda *s: torch.randn(*s, dtype=torch.bfloat16) * 0.1)(D, N) / N ** 0.5),
            "C_imag": _w((lambda *s: torch.randn(*s, dtype=torch.bfloat16) * 0.1)(D, N) / N ** 0.5),
            "log_dt": _w((lambda *s: torch.randn(*s, dtype=torch.bfloat16) * 0.05)(D) * 0.5 - 4.0),
            "D_skip": _w((lambda *s: torch.randn(*s, dtype=torch.bfloat16) * 0.05)(D)),
        }
    _A_in = _A_setup()

    def _B_setup():
        B, S, D, F, C = 1, 2048, 512, 1376, 1
        return {
            "x": _w((lambda *s: torch.randn(*s, dtype=torch.bfloat16) * 0.05)(B, S, D)),
            "w_r": _w((lambda *s: torch.randn(*s, dtype=torch.bfloat16) * 3.2)(D)),
            "w_gate": _w((lambda *s: torch.randn(*s, dtype=torch.bfloat16) * 0.1)(D, F)),
            "w_up": _w((lambda *s: torch.randn(*s, dtype=torch.bfloat16) * 0.1)(D, F)),
            "w_down": _w((lambda *s: torch.randn(*s, dtype=torch.bfloat16) * 0.1)(F, D)),
        }
    _B_in = _B_setup()

    return {
        "A_u": _A_in["u"],
        "A_log_A_real": _A_in["log_A_real"],
        "A_A_imag": _A_in["A_imag"],
        "A_C_real": _A_in["C_real"],
        "A_C_imag": _A_in["C_imag"],
        "A_log_dt": _A_in["log_dt"],
        "A_D_skip": _A_in["D_skip"],
        "B_x": _B_in["x"],
        "B_w_r": _B_in["w_r"],
        "B_w_gate": _B_in["w_gate"],
        "B_w_up": _B_in["w_up"],
        "B_w_down": _B_in["w_down"],
    }

def reference(A_u, A_log_A_real, A_A_imag, A_C_real, A_C_imag, A_log_dt, A_D_skip, B_x, B_w_r, B_w_gate, B_w_up, B_w_down):
    def _A_ref(u, log_A_real, A_imag, C_real, C_imag, log_dt, D_skip):
        L = u.shape[1]
        dt = torch.exp(log_dt)
        A = -torch.exp(log_A_real) + 1j * A_imag
        C = (C_real + 1j * C_imag) * dt[:, None]
        pos = (lambda x, dt: x.to(dt))(torch.arange(L), log_dt.dtype)
        P = torch.exp((A * dt[:, None])[:, :, None] * pos[None, None, :])
        K = 2.0 * torch.einsum("dn,dnl->dl", C, P).real
        L2 = 2 * L
        u_t = (lambda x, *d: x.permute(*d))(u, 0, 2, 1)
        Kf = (lambda x, *a, **k: torch.fft.rfft(x.float(), *a, **k))(K, L2)
        Uf = (lambda x, *a, **k: torch.fft.rfft(x.float(), *a, **k))(u_t, L2)
        y = (lambda x, *a, **k: torch.fft.irfft(x, *a, **k).to(torch.bfloat16))(Uf * Kf[None, :, :], L2)[:, :, :L]
        y = (lambda x, *d: x.permute(*d))(y, 0, 2, 1)
        return y + u * D_skip[None, None, :]

    def _B_ref(x, w_r, w_gate, w_up, w_down):
        B, S, D = x.shape
        C = 1
        r = x @ w_r
        idx = torch.argsort(-r, axis=-1)[:, :C]
        idx_e = (lambda x, n, axis: torch.repeat_interleave(x, n, dim=axis))(idx.reshape(B, C, 1), D, axis=2)
        x_sel = (lambda x, i, axis: torch.take_along_dim(x, i, dim=axis))(x, idx_e, axis=1)
        g = _silu(x_sel @ w_gate)
        u = x_sel @ w_up
        y = (g * u) @ w_down
        r_sel = _sigmoid((lambda x, i, axis: torch.take_along_dim(x, i, dim=axis))(r, idx, axis=1))
        y = y * r_sel.reshape(B, C, 1)
        b_off = (torch.arange(B) * S).reshape(B, 1)
        flat_idx = (idx + b_off).reshape(B * C)
        zero = (x * 0.0).reshape(B * S, D)
        upd = _scatter_add(zero, flat_idx, y.reshape(B * C, D), axis=0)
        return x + upd.reshape(B, S, D)

    x = A_u
    xn = _layernorm(x, axis=-1)
    s = _A_ref(xn, A_log_A_real, A_A_imag, A_C_real, A_C_imag, A_log_dt, A_D_skip)
    g = _silu(_B_ref(xn, B_w_r, B_w_gate, B_w_up, B_w_down))
    return x + s * g
```

```python
import re

TRANS = ("v_exp_f32", "v_log_f32", "v_rcp_f32", "v_rsq_f32", "v_sqrt_f32", "v_sin_f32", "v_cos_f32",
         "v_exp_f16", "v_rcp_f16")
REGRE = re.compile(r"^(-|\|)?(neg\()?([vsa])(\d+|\[(\d+):(\d+)\])\)?\|?$")


def parse_reg(tok):
    tok = tok.strip()
    t = tok
    if t.startswith("-"):
        t = t[1:]
    if t.startswith("|") and t.endswith("|"):
        t = t[1:-1]
    if t == "vcc":
        return [("s", 106), ("s", 107)]
    if t == "vcc_lo":
        return [("s", 106)]
    if t == "vcc_hi":
        return [("s", 107)]
    if t == "exec":
        return [("s", 126), ("s", 127)]
    if t == "exec_lo":
        return [("s", 126)]
    if t == "exec_hi":
        return [("s", 127)]
    if t == "m0":
        return [("s", 124)]
    m = re.match(r"^([vsa])(\d+)$", t)
    if m:
        return [(m.group(1), int(m.group(2)))]
    m = re.match(r"^([vsa])\[(\d+):(\d+)\]$", t)
    if m:
        return [(m.group(1), i) for i in range(int(m.group(2)), int(m.group(3)) + 1)]
    return []


VCC = [("s", 106), ("s", 107)]
EXEC = [("s", 126), ("s", 127)]
M0 = [("s", 124)]
SCC = [("c", 0)]


class Ins:
    __slots__ = ("text", "op", "ops", "mods", "kind", "dst", "src", "srcA", "srcB", "srcC", "passes",
                 "dpp", "trans", "dot", "lane_sel", "rl_src", "perm", "opsel_dst", "wide", "data",
                 "target", "cnt", "idx", "pin", "lat", "note", "barrier_like", "nowait")

    def __init__(self, text):
        self.text = text
        self.note = None
        self.pin = False
        self.nowait = False
        body = text.split(";")[0].strip()
        parts = body.split(None, 1)
        self.op = op = parts[0]
        rest = parts[1] if len(parts) > 1 else ""
        toks, depth, cur = [], 0, ""
        for ch in rest:
            if ch == "[" or ch == "(":
                depth += 1
            if ch == "]" or ch == ")":
                depth -= 1
            if ch == "," and depth == 0:
                toks.append(cur.strip()); cur = ""
            else:
                cur += ch
        if cur.strip():
            toks.append(cur.strip())
        mods = ""
        if toks:
            last = toks[-1].split(None, 1)
            if len(last) > 1:
                toks[-1] = last[0]; mods = last[1]
            elif ":" in last[0] and not re.match(r"^-?\|?[vsa]\[", last[0]) and not op.startswith("s_"):
                mods = last[0]; toks.pop()
        self.ops, self.mods = toks, mods
        self.dst, self.src = [], []
        self.srcA = self.srcB = self.srcC = []
        self.passes = 0
        self.dpp = self.trans = self.dot = self.perm = self.opsel_dst = self.wide = False
        self.lane_sel, self.rl_src, self.data = [], [], []
        self.target = None
        self.cnt = None
        self.lat = 1
        self.barrier_like = False
        R = [parse_reg(t) for t in toks]
        base = re.sub(r"_(e32|e64|dpp|sdwa)$", "", op)
        if op.endswith(":"):
            self.kind = "label"; self.barrier_like = True; return
        if op.startswith("."):
            self.kind = "dir"; self.barrier_like = True; return
        if op.startswith("s_"):
            if op in ("s_waitcnt",):
                self.kind = "wait"; self.barrier_like = True
            elif op == "s_nop":
                self.kind = "nop"
            elif op in ("s_barrier", "s_endpgm", "s_setprio", "s_sleep"):
                self.kind = "ctl"; self.barrier_like = True
            elif op == "s_branch" or op.startswith("s_cbranch"):
                self.kind = "br"; self.target = toks[0]; self.barrier_like = True
                if "scc" in op: self.src = SCC
                if "vcc" in op: self.src = VCC
                if "exec" in op: self.src = EXEC
            elif op.startswith("s_load") or op == "s_memtime" or op == "s_memrealtime":
                self.kind = "smem"; self.cnt = "smem"
                self.dst = R[0]; self.src = sum(R[1:], [])
                self.lat = 50
            else:
                self.kind = "salu"
                if op.startswith("s_cmp") or op.startswith("s_bitcmp"):
                    self.src = sum(R, []); self.dst = SCC
                else:
                    self.dst = list(R[0]); self.src = sum(R[1:], [])
                    noscc = ("s_mov_b32", "s_mov_b64", "s_movk_i32", "s_mul_i32", "s_mul_hi_u32", "s_getpc_b64",
                             "s_cselect_b32", "s_cselect_b64", "s_bfm_b32", "s_bfm_b64", "s_pack_ll_b32_b16", "s_pack_lh_b32_b16",
                             "s_pack_hh_b32_b16", "s_sext_i32_i16", "s_brev_b32", "s_ff1_i32_b64", "s_ff1_i32_b32", "s_flbit_i32_b32")
                    if op not in noscc:
                        self.dst = self.dst + SCC
                    if op in ("s_addc_u32", "s_subb_u32", "s_cselect_b32", "s_cselect_b64", "s_cmov_b32", "s_cmov_b64"):
                        self.src = self.src + SCC
                    if op in ("s_cmov_b32", "s_cmov_b64", "s_addk_i32", "s_mulk_i32", "s_bitset1_b32", "s_bitset0_b32",
                              "s_bitset1_b64", "s_bitset0_b64"):
                        self.src = self.src + R[0]
                    if "saveexec" in op:
                        self.dst = self.dst + EXEC; self.src = self.src + EXEC
            return
        if op.startswith("v_mfma"):
            self.kind = "mfma"
            self.dst = R[0]; self.srcA = R[1]; self.srcB = R[2]; self.srcC = R[3]
            self.src = R[1] + R[2] + R[3] + EXEC
            self.passes = 8 if "32x32x16" in op else 4
            self.lat = self.passes
            return
        if op.startswith("v_"):
            self.kind = "valu"
            self.dpp = op.endswith("_dpp") or any(k in mods for k in ("row_shr", "row_shl", "row_bcast", "wave_sh", "wave_ro", "quad_perm", "row_ror", "row_newbcast", "row_mirror", "row_half_mirror"))
            self.trans = base in TRANS
            self.dot = base.startswith("v_dot")
            if base == "v_nop":
                return
            if base.startswith("v_cmp"):
                self.dst = list(R[0]); self.src = sum(R[1:], [])
                if base.startswith("v_cmpx"):
                    raise ValueError("avoid v_cmpx")
            elif base in ("v_readlane_b32",):
                self.dst = R[0]; self.src = R[1] + R[2]; self.rl_src = R[1]; self.lane_sel = R[2]
            elif base == "v_readfirstlane_b32":
                self.dst = R[0]; self.src = R[1]; self.rl_src = R[1]
            elif base == "v_writelane_b32":
                self.dst = R[0]; self.src = R[0] + R[1] + R[2]; self.lane_sel = R[2]
            elif base.startswith("v_permlane"):
                self.dst = R[0] + R[1]; self.src = R[0] + R[1]; self.perm = True
            elif base in ("v_add_co_u32", "v_sub_co_u32", "v_subrev_co_u32"):
                self.dst = R[0] + R[1]; self.src = sum(R[2:], [])
            elif base in ("v_addc_co_u32", "v_subb_co_u32"):
                self.dst = R[0] + R[1]; self.src = sum(R[2:], [])
            else:
                self.dst = list(R[0]); self.src = sum(R[1:], [])
                if base == "v_cndmask_b32" and len(toks) == 3:
                    self.src = self.src + VCC
                acc = base in ("v_fmac_f32", "v_mac_f32", "v_dot2c_f32_bf16", "v_dot2c_f32_f16", "v_pk_fmac_f16", "v_fmac_f16",
                               "v_fma_mixlo_f16", "v_fma_mixhi_f16")
                if acc or self.dpp or "UNUSED_PRESERVE" in mods:
                    self.src = self.src + R[0]
                if base in ("v_fma_mixlo_f16", "v_fma_mixhi_f16"):
                    self.opsel_dst = True
                if "dst_sel:" in mods and "dst_sel:DWORD" not in mods:
                    self.opsel_dst = True
                m = re.search(r"op_sel:\[([\d,]+)\]", mods)
                if m and not base.startswith("v_pk_") and not base.startswith("v_fma_mix") and not base.startswith("v_dot"):
                    bits = m.group(1).split(",")
                    if len(bits) == len(toks) and bits[-1] == "1":
                        self.opsel_dst = True; self.src = self.src + R[0]
                if self.dot:
                    if base.startswith("v_dot2c"):
                        self.srcC = R[0]; self.srcA = R[1] + R[2]
                    else:
                        self.srcC = R[3]; self.srcA = R[1] + R[2]
            self.src = self.src + EXEC
            self.lat = 2 if self.trans else 1
            return
        if op.startswith("ds_"):
            self.kind = "ds"; self.cnt = "lds"; self.lat = 20
            if "addtid" in op:
                if "write" in op:
                    self.src = R[0] + M0
                else:
                    self.dst = R[0]; self.src = list(M0)
            elif op.startswith("ds_read") or "_rtn" in op or "permute" in op or "swizzle" in op:
                self.dst = R[0]; self.src = sum(R[1:], [])
                if "d16" in op: self.src = self.src + R[0]
            else:
                self.src = sum(R, [])
            self.src = self.src + EXEC
            return
        if op.startswith("global_") or op.startswith("buffer_"):
            self.kind = "vm"; self.cnt = "vm"; self.lat = 200
            if "_lds_" in op or " lds" in text:
                self.src = sum(R, []) + M0
            elif "load" in op:
                self.dst = R[0]; self.src = sum(R[1:], [])
                if "d16" in op: self.src = self.src + R[0]
            elif "store" in op:
                self.src = sum(R, [])
                self.data = R[1] if op.startswith("global_") else R[0]
                self.wide = ("x3" in op or "x4" in op)
            elif "atomic" in op:
                if "sc0" in mods:
                    self.dst = R[0]; self.src = sum(R[1:], [])
                else:
                    self.src = sum(R, [])
            else:
                raise ValueError(text)
            self.src = self.src + EXEC
            return
        raise ValueError("unknown instr: " + text)


def need_dist(p, c):
    d = 0
    if p.kind not in ("valu", "mfma", "salu", "vm"):
        return 0
    pd = set(p.dst)
    if p.kind == "salu":
        if ("s", 124) in pd and ((c.kind == "ds" and "addtid" in c.op) or (c.kind == "vm" and ("_lds_" in c.op))):
            d = max(d, 1)
        return d
    if p.kind == "vm":
        if p.wide and c.kind in ("valu", "mfma", "ds", "vm") and set(p.data) & set(c.dst):
            d = max(d, 2)
        return d
    if p.kind == "mfma":
        big = 12 if p.passes == 8 else 8
        if c.kind == "mfma":
            if pd & (set(c.srcA) | set(c.srcB)):
                d = max(d, big)
            if pd & set(c.srcC):
                if not (c.srcC == p.dst and c.passes == p.passes):
                    d = max(d, 10 if p.passes == 8 else 6)
            elif pd & set(c.dst):
                d = max(d, 10 if p.passes == 8 else 6)
        elif c.kind in ("valu", "ds", "vm"):
            if pd & (set(c.src) | set(c.dst)):
                d = max(d, big)
            if c.kind == "valu" and set(p.srcC) & set(c.dst):
                d = max(d, 7 if p.passes == 8 else 3)
            if c.kind in ("ds", "vm") and set(p.srcC) & set(c.dst):
                d = max(d, 7 if p.passes == 8 else 3)
        return d
    pv = {r for r in pd if r[0] in "va"}
    ps = {r for r in pd if r[0] == "s"}
    if c.kind == "mfma":
        if pv & set(c.src):
            d = max(d, 3 if p.dot else 2)
        if p.dot and pv & set(c.dst):
            d = max(d, 3)
    if c.kind == "valu":
        cs = set(c.src)
        if p.trans and pv & cs:
            d = max(d, 1)
        if p.opsel_dst and pv & (cs | set(c.dst)):
            d = max(d, 1)
        if c.dpp and pv & cs:
            d = max(d, 2)
        if c.perm and pv & cs:
            d = max(d, 2)
        if c.rl_src and pv & set(c.rl_src):
            d = max(d, 1)
        if ps & set(c.lane_sel):
            d = max(d, 4)
        if ps & cs:
            d = max(d, 2)
        if p.dot:
            pb = re.sub(r"_(e32|e64|dpp|sdwa)$", "", p.op); cb = re.sub(r"_(e32|e64|dpp|sdwa)$", "", c.op)
            if pb == cb:
                if pv & set(c.srcA):
                    d = max(d, 3)
            elif pv & (cs | set(c.dst)):
                d = max(d, 3)
    if c.kind in ("vm", "ds"):
        if c.kind == "vm" and ps & set(c.src):
            d = max(d, 5)
        if p.dot and pv & set(c.src):
            d = max(d, 3)
        if p.trans and pv & set(c.src):
            d = max(d, 1)
    return d


MAXD = 12


class State:
    def __init__(self):
        self.recent = []
        self.vm = {}
        self.lds = {}
        self.smem = set()
        self.smem_any = False

    def copy(self):
        s = State()
        s.recent = list(self.recent); s.vm = dict(self.vm); s.lds = dict(self.lds)
        s.smem = set(self.smem); s.smem_any = self.smem_any
        return s

    def merge(self, o):
        ch = False
        cur = {id(i): (i, d) for i, d in self.recent}
        for i, d in o.recent:
            if id(i) not in cur or cur[id(i)][1] > d:
                cur[id(i)] = (i, d); ch = True
        self.recent = list(cur.values())
        for a, b in ((self.vm, o.vm), (self.lds, o.lds)):
            for r, n in b.items():
                if r not in a or a[r] > n:
                    a[r] = n; ch = True
        if not o.smem <= self.smem:
            self.smem |= o.smem; ch = True
        if o.smem_any and not self.smem_any:
            self.smem_any = True; ch = True
        return ch

    def advance(self, n):
        self.recent = [(i, d + n) for i, d in self.recent if d + n < MAXD + 1]

    def apply_wait(self, vm, lg):
        if vm is not None:
            self.vm = {r: n for r, n in self.vm.items() if n < vm}
        if lg is not None:
            if lg == 0:
                self.lds = {}; self.smem = set(); self.smem_any = False
            elif not self.smem_any:
                self.lds = {r: n for r, n in self.lds.items() if n < lg}

    def needs(self, ins):
        regs = set(ins.src) | set(ins.dst)
        vm = lg = None
        for r in regs:
            if r in self.vm:
                vm = self.vm[r] if vm is None else min(vm, self.vm[r])
            if r in self.lds:
                lg = self.lds[r] if lg is None else min(lg, self.lds[r])
            if r in self.smem:
                lg = 0
        if lg is not None and self.smem_any:
            lg = 0
        if vm is not None: vm = min(vm, 63)
        if lg is not None: lg = min(lg, 15)
        return vm, lg

    def issue(self, ins):
        if ins.cnt == "vm":
            for r in self.vm: self.vm[r] += 1
            for r in ins.dst: self.vm[r] = 0
        elif ins.cnt == "lds":
            for r in self.lds: self.lds[r] += 1
            for r in ins.dst: self.lds[r] = 0
        elif ins.cnt == "smem":
            self.smem_any = True
            for r in ins.dst: self.smem.add(r)


def parse_wait(ins):
    vm = lg = None
    m = re.search(r"vmcnt\((\d+)\)", ins.text)
    if m: vm = int(m.group(1))
    m = re.search(r"lgkmcnt\((\d+)\)", ins.text)
    if m: lg = int(m.group(1))
    return vm, lg


def finalize(insts):
    label_in = {}
    for it in range(20):
        out = []
        st = State()
        changed = False
        live = True
        for ins in insts:
            if ins.kind == "label":
                name = ins.op[:-1]
                if name in label_in:
                    if live:
                        label_in[name].merge(st)
                    st = label_in[name].copy()
                else:
                    if live:
                        label_in[name] = st.copy()
                    else:
                        st = State(); label_in[name] = st.copy()
                live = True
                out.append(ins.text)
                continue
            if ins.kind == "dir":
                out.append(ins.text); continue
            if ins.kind == "wait":
                vm, lg = parse_wait(ins)
                st.apply_wait(vm, lg); st.advance(1)
                out.append("  " + ins.text); continue
            if ins.kind == "nop":
                n = int(ins.ops[0]) + 1
                st.advance(n); out.append("  " + ins.text); continue
            vm, lg = (None, None) if ins.nowait else st.needs(ins)
            if vm is not None or lg is not None:
                w = "s_waitcnt" + (f" vmcnt({vm})" if vm is not None else "") + (f" lgkmcnt({lg})" if lg is not None else "")
                out.append("  " + w); st.apply_wait(vm, lg); st.advance(1)
            need = 0
            for p, d in st.recent:
                nd = need_dist(p, ins)
                if nd - d > need: need = nd - d
            while need > 0:
                n = min(need, 16)
                out.append(f"  s_nop {n-1}"); st.advance(n); need -= n
            out.append("  " + ins.text)
            st.advance(1)
            st.issue(ins)
            if ins.kind in ("valu", "mfma", "salu", "vm"):
                st.recent.append((ins, 0))
            if ins.kind == "br":
                t = ins.target
                if t in label_in:
                    if label_in[t].merge(st): changed = True
                else:
                    label_in[t] = st.copy()
                if ins.op == "s_branch":
                    live = False
            if ins.op == "s_endpgm":
                live = False
        if not changed:
            return out
    raise RuntimeError("no fixpoint")


def schedule(block, lat_override=None):
    n = len(block)
    preds = [[] for _ in range(n)]
    last_w, readers = {}, {}
    last_kind = {}
    for i, c in enumerate(block):
        deps = {}
        for r in c.src:
            if r in last_w:
                p = last_w[r]
                l = block[p].lat if block[p].kind in ("ds", "vm", "smem") else 1
                deps[p] = max(deps.get(p, 0), l)
        for r in c.dst:
            if r in last_w:
                p = last_w[r]
                l = block[p].lat if block[p].kind in ("ds", "vm", "smem") else 1
                deps[p] = max(deps.get(p, 0), l)
            for q in readers.get(r, []):
                if q != i: deps[q] = max(deps.get(q, 0), 1)
        if c.cnt:
            if c.cnt in last_kind:
                deps[last_kind[c.cnt]] = max(deps.get(last_kind[c.cnt], 0), 1)
            last_kind[c.cnt] = i
        if c.pin:
            for q in range(i):
                deps[q] = max(deps.get(q, 0), 1)
        for q in range(i):
            if block[q].pin: deps[q] = max(deps.get(q, 0), 1)
        for p in list(deps):
            deps[p] = max(deps[p], need_dist(block[p], c) + 1)
        for q in range(max(0, i - 40), i):
            nd = need_dist(block[q], c)
            if nd: deps[q] = max(deps.get(q, 0), nd + 1)
        preds[i] = list(deps.items())
        for r in c.src:
            readers.setdefault(r, []).append(i)
        for r in c.dst:
            last_w[r] = i; readers[r] = []
    done = [None] * n
    t = 0
    order = []
    remaining = list(range(n))
    while remaining:
        best = None; best_t = None
        for i in remaining:
            if any(done[p] is None for p, _ in preds[i]):
                continue
            rt = max([done[p] + l for p, l in preds[i]], default=0)
            if rt <= t:
                best = i; best_t = t; break
            if best_t is None or rt < best_t:
                best = i; best_t = rt
        t = best_t
        done[best] = t
        order.append(block[best])
        remaining.remove(best)
        t += 2 if block[best].trans else (2 if block[best].kind == "mfma" else 1)
    return order


class Asm:
    def __init__(self):
        self.ins = []
        self.stack = []
        self.nlab = 0

    def __call__(self, text):
        for line in text.strip().split("\n"):
            line = line.strip()
            if not line or line.startswith(";"):
                continue
            self.ins.append(Ins(line))
        return self.ins[-1]

    def label(self, name):
        self.ins.append(Ins(name + ":"))

    def newlabel(self, base="L"):
        self.nlab += 1
        return f"{base}_{self.nlab}"

    def begin(self):
        self.stack.append(self.ins); self.ins = []

    def end(self, sched=True):
        blk = self.ins
        self.ins = self.stack.pop()
        if sched:
            cur = []
            for i in blk:
                if i.barrier_like:
                    self.ins += schedule(cur); cur = []
                    self.ins.append(i)
                else:
                    cur.append(i)
            self.ins += schedule(cur)
        else:
            self.ins += blk

    def capture(self):
        self.stack.append(self.ins); self.ins = []

    def take(self):
        blk = self.ins
        self.ins = self.stack.pop()
        return blk

    def text(self):
        return "\n".join(finalize(self.ins))


class Regs:
    def __init__(self, kind, lo, hi):
        self.kind = kind
        self.free = set(range(lo, hi))
        self.names = {}
        self.high = lo

    def alloc(self, name, n=1, align=None):
        if align is None:
            align = 1 if n == 1 else (2 if self.kind == "v" else (2 if n == 2 else 4))
        assert name not in self.names, name
        for b in sorted(self.free):
            if b % align == 0 and all((b + i) in self.free for i in range(n)):
                for i in range(n): self.free.remove(b + i)
                self.names[name] = (b, n)
                self.high = max(self.high, b + n)
                return Reg(self.kind, b, n)
        raise RuntimeError("out of regs for " + name)

    def release(self, *names):
        for name in names:
            b, n = self.names.pop(name)
            for i in range(n): self.free.add(b + i)

    def snapshot(self):
        return (set(self.free), dict(self.names))

    def restore(self, s):
        self.free, self.names = set(s[0]), dict(s[1])


class Reg:
    def __init__(self, kind, b, n):
        self.kind, self.b, self.n = kind, b, n

    def __str__(self):
        return f"{self.kind}{self.b}" if self.n == 1 else f"{self.kind}[{self.b}:{self.b+self.n-1}]"

    __repr__ = __str__

    def __getitem__(self, i):
        if isinstance(i, slice):
            a = i.start or 0; e = i.stop if i.stop is not None else self.n
            assert 0 <= a < e <= self.n
            return Reg(self.kind, self.b + a, e - a)
        assert 0 <= i < self.n, (i, self.n)
        return Reg(self.kind, self.b + i, 1)

    def __format__(self, spec):
        return str(self)
```

```python
from gen import *


def silu_rb(G, out, x, tmp):
    a = G.a
    n = x.n
    a(f"s_mov_b32 {sX[0]}, {LOG2E | 0x80000000:#x}")
    for i in range(0, n, 2):
        a(f"v_pk_mul_f32 {tmp[i:i+2]}, {x[i:i+2]}, {Reg('s', sX[0].b, 2)} op_sel_hi:[1,0]")
    for i in range(n):
        a(f"v_exp_f32 {tmp[i]}, {tmp[i]}")
    for i in range(0, n, 2):
        a(f"v_pk_add_f32 {tmp[i:i+2]}, {tmp[i:i+2]}, 1.0 op_sel_hi:[1,0]")
    for i in range(n):
        a(f"v_rcp_f32 {tmp[i]}, {tmp[i]}")
    for i in range(0, n, 2):
        a(f"v_pk_mul_f32 {tmp[i:i+2]}, {tmp[i:i+2]}, {x[i:i+2]}")
    for i in range(n):
        a(f"v_cvt_pk_bf16_f32 {out[i]}, 0, {tmp[i]}")


def urole(G):
    a, V = G.a, G.V
    lane, l4, l16 = G.lane, G.l4, G.l16
    sTL = [S(96 + i) for i in range(4)]
    sTile = [S(18), S(19), S(3), S(63)]
    sNT = S(70)
    xo = [V.alloc(f"xo{i}", 2) for i in range(4)]
    xq = [V.alloc(f"xq{i}", 2) for i in range(4)]
    ao = [V.alloc(f"ao{i}") for i in range(4)]
    so = [V.alloc(f"so{i}") for i in range(4)]
    sq = V.alloc("sq"); aq = V.alloc("aq"); r64 = V.alloc("r64")
    a.begin()
    for i, t in enumerate((0, 3, 4, 7)):
        a(f"s_xor_b32 {sTile[i]}, {sPART}, {t}")
    a(f"s_lshl_b32 {sT[0]}, {sW}, 2")
    a(f"s_lshr_b32 {sT[0]}, 0x6521, {sT[0]}")
    a(f"s_and_b32 {sT[0]}, {sT[0]}, 15")
    a(f"s_xor_b32 {sNT}, {sT[0]}, {sPART}")
    a(f"s_lshl_b32 {sT[1]}, {sW}, 6")
    a(f"v_add_u32 {r64}, {sT[1]}, {lane}")
    a(f"v_lshlrev_b32 {sq}, 10, {r64}")
    a(f"s_lshl_b32 {sT[2]}, {sG}, 3")
    for i in range(4):
        a(f"s_lshl_b32 {sT[3]}, {sTile[i]}, 18")
        a(f"s_add_u32 {sT[3]}, {sT[3]}, {sT[2]}")
        a(f"v_add_u32 {ao[i]}, {sT[3]}, {sq}")
        a(f"global_load_dwordx2 {xo[i]}, {ao[i]}, {pU}")
    a(f"s_lshl_b32 {sT[3]}, {sNT}, 18")
    a(f"s_add_u32 {sT[3]}, {sT[3]}, {sT[2]}")
    a(f"v_lshlrev_b32 {aq}, 12, {lane}")
    a(f"v_add_u32 {aq}, {sT[3]}, {aq}")
    for e in range(4):
        a(f"global_load_dwordx2 {xq[e]}, {aq}, {pU} offset:{1024*e}")
    a.end(False)
    G.prefetch_code()
    a.begin()
    a(f"v_lshlrev_b32 {sq}, 3, {r64}")
    for i in range(4):
        a(f"s_lshl_b32 {sT[3]}, {sTile[i]}, 11")
        a(f"s_add_u32 {sT[3]}, {sT[3]}, {W_ST}")
        a(f"v_add_u32 {so[i]}, {sT[3]}, {sq}")
    a(f"s_lshl_b32 {sT[3]}, {sNT}, 11")
    a(f"s_add_u32 {sT[3]}, {sT[3]}, {W_ST}")
    a(f"v_lshlrev_b32 {sq}, 5, {lane}")
    a(f"v_add_u32 {sq}, {sT[3]}, {sq}")
    a.end(False)
    V.release("aq")
    pub = G.stats("U")
    G.tab("U", pub)
    G.dump_lds("tab")
    go = [V.alloc(f"go{i}", 2) for i in range(4)]
    gq = V.alloc("gq", 8)
    xf = [V.alloc(f"xf{i}", 4) for i in range(4)]
    xn = [V.alloc(f"xn{i}", 4) for i in range(4)]
    qf = [V.alloc(f"qf{i}", 4) for i in range(4)]
    chk = V.alloc("chk")
    def issue():
        for i in range(4):
            a(f"global_load_dwordx2 {go[i]}, {so[i]}, {pWS} sc1")
        a(f"global_load_dwordx4 {gq[0:4]}, {sq}, {pWS} sc1")
        a(f"global_load_dwordx4 {gq[4:8]}, {sq}, {pWS} offset:16 sc1")
    issue()
    for src, dst in ((xo, xf), (xq, qf)):
        for i in range(4):
            for k in range(2):
                a(f"v_lshlrev_b32 {dst[i][2*k]}, 16, {src[i][k]}")
                a(f"v_and_b32 {dst[i][2*k+1]}, 0xffff0000, {src[i][k]}")
    a(f"s_lshl_b32 {sD[0]}, {sDSK[0]}, 16")
    a(f"s_and_b32 {sD[1]}, {sDSK[0]}, 0xffff0000")
    a(f"s_lshl_b32 {sD[2]}, {sDSK[1]}, 16")
    a(f"s_and_b32 {sD[3]}, {sDSK[1]}, 0xffff0000")
    uo = V.alloc("uo"); uq = V.alloc("uq"); up = V.alloc("up"); mi = V.alloc("mi")
    a(f"v_lshlrev_b32 {uo}, 1, {r64}")
    a(f"s_lshl_b32 {sT[0]}, {sNT}, 9")
    a(f"v_lshlrev_b32 {up}, 3, {lane}")
    a(f"v_add_u32 {uq}, {sT[0]}, {up}")
    a(f"s_mul_i32 {sT[0]}, {sW}, {UTC}")
    a(f"v_add_u32 {up}, {sT[0]}, {up}")
    a(f"v_mov_b32 {mi}, {MISC}")
    uoa = [V.alloc(f"uoa{i}") for i in range(4)]
    for i in range(4):
        a(f"s_lshl_b32 {sT[0]}, {sTile[i]}, 9")
        a(f"v_add_u32 {uoa[i]}, {sT[0]}, {uo}")
    a(f"s_mov_b32 {sSPIN}, {SPIN}")
    a("s_branch L_UP_CHK")
    a.label("L_UP_RETRY")
    issue()
    a.label("L_UP_CHK")
    tags = [go[i][1] for i in range(4)] + [gq[1], gq[3], gq[5], gq[7]]
    a(f"v_xor_b32 {chk}, {sTAG}, {tags[0]}")
    for t in tags[1:]:
        a(f"v_bitop3_b32 {chk}, {chk}, {t}, {sTAG} bitop3:0xf6")
    a(f"v_cmp_ne_u32 vcc, 0, {chk}")
    a(f"s_cbranch_vccz L_UP_OK")
    a(f"s_sub_u32 {sSPIN}, {sSPIN}, 1")
    a(f"s_cbranch_scc0 L_UP_RETRY")
    a.label("L_UP_OK")
    G.stamp(4)
    tf = V.alloc("tf")
    a(f"ds_read_b32 {tf}, {mi} offset:{M_TABF}")
    a.begin()
    grans = go + [gq[0:2], gq[2:4], gq[4:6], gq[6:8]]
    srcs = xf + qf
    dsts = xn + qf
    for r in range(8):
        g = grans[r]
        a(f"v_and_b32 {g[1]}, 0xffff0000, {g[0]}")
        a(f"v_lshlrev_b32 {g[0]}, 16, {g[0]}")
        a(f"v_rcp_f32 {g[1]}, {g[1]}")
    cq = [V.alloc(f"cq{i}", 2) for i in range(4)]
    co = [V.alloc(f"co{i}", 2) for i in range(4)]
    for r in (4, 5, 6, 7, 0, 1, 2, 3):
        g, s, d = grans[r], srcs[r], dsts[r]
        for k in (0, 2):
            a(f"v_pk_add_f32 {d[k:k+2]}, {s[k:k+2]}, {g} op_sel_hi:[1,0] neg_lo:[0,1] neg_hi:[0,1]")
        for k in range(4):
            a(f"v_cvt_pk_bf16_f32 {d[k]}, 0, {d[k]}")
        for k in (0, 2):
            a(f"v_pk_mul_f32 {d[k:k+2]}, {d[k:k+2]}, {g} op_sel:[0,1] op_sel_hi:[1,1]")
        for k in range(4):
            a(f"v_cvt_pk_bf16_f32 {d[k]}, 0, {d[k]}")
        if r < 4:
            a(f"v_cvt_pk_f16_f32 {co[r][0]}, {d[0]}, {d[1]}")
            a(f"v_cvt_pk_f16_f32 {co[r][1]}, {d[2]}, {d[3]}")
        if r == 7:
            for c in range(4):
                a(f"v_cvt_pk_f16_f32 {cq[c][0]}, {qf[0][c]}, {qf[1][c]}")
                a(f"v_cvt_pk_f16_f32 {cq[c][1]}, {qf[2][c]}, {qf[3][c]}")
    z = gq[0:2]
    a(f"v_mov_b32 {z[0]}, 0")
    a(f"v_mov_b32 {z[1]}, 0")
    a.end()
    a(f"s_mov_b32 {sSPIN}, {SPIN}")
    a("s_branch L_TF_CHK")
    a.label("L_TF_RETRY")
    a(f"ds_read_b32 {tf}, {mi} offset:{M_TABF}")
    a.label("L_TF_CHK")
    a(f"v_cmp_ne_u32 vcc, 4, {tf}")
    a(f"s_cbranch_vccz L_TF_OK")
    a(f"s_sub_u32 {sSPIN}, {sSPIN}, 1")
    a(f"s_cbranch_scc0 L_TF_RETRY")
    a.label("L_TF_OK")
    for c in range(4):
        a(f"ds_write_b64 {uq}, {cq[c]} offset:{c*UTC + 512}")
    for i in range(4):
        for c in range(4):
            op = "ds_write_b16_d16_hi" if c & 1 else "ds_write_b16"
            a(f"{op} {uoa[i]}, {co[i][c>>1]} offset:{c*UTC + 512}")
    a(f"ds_write_b64 {up}, {z}")
    a("s_waitcnt lgkmcnt(0)")
    G.stamp(5)
    a("s_barrier")
    G.dump_lds("ut")
    for n in ["gq", "tf", "chk", "uo", "uq", "up", "sq"] + [f"{p}{i}" for p in ("go", "qf", "cq", "co", "uoa", "so", "xq", "xo") for i in range(4)]:
        V.release(n)
    inv = V.alloc("inv", 4); ir = V.alloc("ir", 2); t2 = V.alloc("t2", 2)
    a(f"ds_read_b128 {inv}, {mi} offset:{M_INV}")
    a(f"ds_read_b64 {ir}, {mi} offset:{M_IDX}")
    a(f"s_or_b32 {sT[0]}, s2, {sW}")
    a(f"s_cmp_eq_u32 {sT[0]}, 0")
    a(f"s_cselect_b64 exec, 1, 0")
    a(f"s_add_u32 {sT[1]}, {sE}, 1")
    a(f"v_mov_b32 {t2[0]}, 0")
    a(f"v_mov_b32 {t2[1]}, {sT[1]}")
    a(f"global_store_dword {t2[0]}, {t2[1]}, {pWS} sc1")
    a(f"s_mov_b64 exec, -1")
    e1 = [V.alloc(f"e1{i}", 4) for i in range(4)]
    gg = [V.alloc(f"gg{i}", 4) for i in range(4)]
    p = [V.alloc(f"p{i}", 4) for i in range(2)]
    ea = V.alloc("ea"); cn = V.alloc("cn")
    sav = V.alloc("sav", 14)
    a(f"v_lshlrev_b32 {ea}, 2, {r64}")
    a(f"v_readfirstlane_b32 {sIDX}, {ir[0]}")
    a(f"v_readfirstlane_b32 {sRB}, {ir[1]}")
    sOW, sOM = S(71), S(44, 2)
    a(f"s_lshr_b32 {sOW}, {sIDX}, 6")
    a(f"s_and_b32 {sT[0]}, {sIDX}, 63")
    a(f"s_lshl_b64 {sOM}, 1, {sT[0]}")
    sOWN = S(46)
    a(f"s_mov_b32 {sOWN}, 0")
    for i in range(4):
        a.begin()
        for k in (0, 2):
            a(f"v_pk_mul_f32 {e1[i][k:k+2]}, {xn[i][k:k+2]}, {sD[k:k+2]}")
        for k in range(4):
            a(f"v_cvt_pk_bf16_f32 {e1[i][k]}, 0, {e1[i][k]}")
        silu_rb(G, gg[i], xn[i], gg[i])
        a.end()
        if i == 0:
            pass
    for i in range(4):
        pp = p[i & 1]
        a(f"s_mov_b32 {sSPIN}, {SPIN}")
        a.label(f"L_EX{i}")
        a(f"ds_read_b32 {cn}, {mi} offset:{M_EXC + 4*i}")
        for c in range(4):
            a(f"ds_read_b32 {pp[c]}, {ea} offset:{EX + i*4096 + c*1024}")
        a(f"v_cmp_ne_u32 vcc, 4, {cn}")
        a(f"s_cbranch_vccz L_EX{i}_OK")
        a(f"s_sub_u32 {sSPIN}, {sSPIN}, 1")
        a(f"s_cbranch_scc0 L_EX{i}")
        a.label(f"L_EX{i}_OK")
        a.begin()
        for k in range(4):
            a(f"v_cvt_pk_bf16_f32 {pp[k]}, 0, {pp[k]}")
        for k in (0, 2):
            a(f"v_pk_fma_f32 {pp[k:k+2]}, {pp[k:k+2]}, {inv[k:k+2]}, {e1[i][k:k+2]}")
        for k in range(4):
            a(f"v_cvt_pk_bf16_f32 {e1[i][k]}, 0, {pp[k]}")
        for k in (0, 2):
            a(f"v_pk_mul_f32 {pp[k:k+2]}, {e1[i][k:k+2]}, {gg[i][k:k+2]}")
        for k in range(4):
            a(f"v_cvt_pk_bf16_f32 {pp[k]}, 0, {pp[k]}")
        for k in (0, 2):
            a(f"v_pk_add_f32 {pp[k:k+2]}, {pp[k:k+2]}, {xf[i][k:k+2]}")
        a(f"v_cvt_pk_bf16_f32 {gg[i][0]}, {pp[0]}, {pp[1]}")
        a(f"v_cvt_pk_bf16_f32 {gg[i][1]}, {pp[2]}, {pp[3]}")
        a(f"s_lshl_b32 {sT[0]}, {sTile[i]}, 2")
        a(f"s_add_u32 {sT[0]}, {sT[0]}, {sW}")
        a(f"s_cmp_eq_u32 {sT[0]}, {sOW}")
        a(f"s_cselect_b64 {sTP[1]}, {sOM}, 0")
        a(f"s_andn2_b64 exec, -1, {sTP[1]}")
        a(f"global_store_dwordx2 {ao[i]}, {gg[i][0:2]}, {pOUT}")
        a(f"s_mov_b64 exec, -1")
        a.end()
        a(f"s_cmp_eq_u32 {sT[0]}, {sOW}")
        a(f"s_cbranch_scc0 L_NS{i}")
        a(f"s_mov_b32 {sOWN}, 1")
        for k in (0, 2):
            a(f"v_pk_mov_b32 {sav[k:k+2]}, {e1[i][k:k+2]}, {e1[i][k:k+2]} op_sel:[0,1]")
            a(f"v_pk_mov_b32 {sav[4+k:6+k]}, {xf[i][k:k+2]}, {xf[i][k:k+2]} op_sel:[0,1]")
            a(f"v_pk_mov_b32 {sav[8+k:10+k]}, {xn[i][k:k+2]}, {xn[i][k:k+2]} op_sel:[0,1]")
        a(f"v_mov_b32 {sav[12]}, {ao[i]}")
        a.label(f"L_NS{i}")
        G.stamp(6 + i)
    a(f"s_cmp_eq_u32 {sOWN}, 0")
    a(f"s_cbranch_scc1 L_FIN")
    q = [e1[0], e1[1], e1[2]]
    ga = ea
    a(f"s_mul_i32 {sT[0]}, {sG}, {W_FG}")
    a(f"s_add_u32 {sT[0]}, {sT[0]}, {W_FFN}")
    a(f"v_add_u32 {ga}, {sT[0]}, {l16}")
    a(f"v_mov_b32 {q[2][0]}, 0")
    a(f"v_mov_b32 {q[2][1]}, {sTAG}")
    a(f"v_mov_b32 {q[2][2]}, 0")
    a(f"v_mov_b32 {q[2][3]}, {sTAG}")
    a(f"s_mov_b32 {sSPIN}, {SPIN}")
    rs = gg[0]
    first = True
    a.label("L_GA")
    a(f"global_load_dwordx4 {q[0]}, {ga}, {pWS} sc1")
    a(f"global_load_dwordx4 {q[1]}, {ga}, {pWS} offset:1024 sc1")
    a(f"s_mov_b32 exec_hi, 0xfff")
    a(f"global_load_dwordx4 {q[2]}, {ga}, {pWS} offset:2048 sc1")
    a(f"s_mov_b32 exec_hi, -1")
    a(f"v_mov_b32 {rs[0]}, {sRB}")
    a(f"v_mul_f32 {rs[0]}, {LOG2E | 0x80000000:#x}, {rs[0]}")
    a(f"v_exp_f32 {rs[0]}, {rs[0]}")
    a(f"v_add_f32 {rs[0]}, 1.0, {rs[0]}")
    a(f"v_rcp_f32 {rs[0]}, {rs[0]}")
    a(f"v_cvt_pk_bf16_f32 {rs[0]}, 0, {rs[0]}")
    tags = [q[0][1], q[0][3], q[1][1], q[1][3], q[2][1], q[2][3]]
    a(f"v_xor_b32 {cn}, {sTAG}, {tags[0]}")
    for t in tags[1:]:
        a(f"v_bitop3_b32 {cn}, {cn}, {t}, {sTAG} bitop3:0xf6")
    a(f"v_cmp_ne_u32 vcc, 0, {cn}")
    a(f"s_cbranch_vccz L_GA_OK")
    a(f"s_sub_u32 {sSPIN}, {sSPIN}, 1")
    a(f"s_cbranch_scc0 L_GA")
    a.label("L_GA_OK")
    G.stamp(10)
    y0, y1 = q[0][0], q[0][2]
    a(f"v_add_f32 {y0}, {y0}, {q[1][0]}")
    a(f"v_add_f32 {y1}, {y1}, {q[1][2]}")
    a(f"v_add_f32 {y0}, {y0}, {q[2][0]}")
    a(f"v_add_f32 {y1}, {y1}, {q[2][2]}")
    a(f"v_permlane32_swap_b32 {y0}, {y1}")
    a(f"v_add_f32 {y0}, {y0}, {y1}")
    a(f"v_mov_b32 {y1}, {y0}")
    a(f"v_permlane16_swap_b32 {y0}, {y1}")
    a(f"v_add_f32 {y0}, {y0}, {y1}")
    for r in (2, 4, 8):
        a(f"v_add_f32_dpp {y0}, {y0}, {y0} row_ror:{r} row_mask:0xf bank_mask:0xf")
    a(f"v_cvt_pk_bf16_f32 {y0}, 0, {y0}")
    a(f"v_mul_f32 {y0}, {y0}, {rs[0]}")
    a(f"v_cvt_pk_bf16_f32 {y0}, 0, {y0}")
    for k, ln in enumerate((0, 32, 1, 33)):
        a(f"v_readlane_b32 {sT[k]}, {y0}, {ln}")
    B = gg[1]; g2 = gg[2]
    for k in (0, 2):
        a(f"v_pk_add_f32 {B[k:k+2]}, {sav[8+k:10+k]}, {sTP[k//2]}")
    for k in range(4):
        a(f"v_cvt_pk_bf16_f32 {B[k]}, 0, {B[k]}")
    silu_rb(G, g2, B, g2)
    for k in (0, 2):
        a(f"v_pk_mul_f32 {g2[k:k+2]}, {g2[k:k+2]}, {sav[k:k+2]}")
    for k in range(4):
        a(f"v_cvt_pk_bf16_f32 {g2[k]}, 0, {g2[k]}")
    for k in (0, 2):
        a(f"v_pk_add_f32 {g2[k:k+2]}, {g2[k:k+2]}, {sav[4+k:6+k]}")
    a(f"v_cvt_pk_bf16_f32 {B[0]}, {g2[0]}, {g2[1]}")
    a(f"v_cvt_pk_bf16_f32 {B[1]}, {g2[2]}, {g2[3]}")
    a(f"s_mov_b64 exec, {sOM}")
    a(f"global_store_dwordx2 {sav[12]}, {B[0:2]}, {pOUT}")


def conv(G, part, A, Zf, box, bA, wA, exA, mi):
    a, V = G.a, G.V
    tiles = OWN[part]
    snap = V.snapshot()
    acc = {T: V.alloc(f"acc{T}", 4) for T in tiles}
    NB = 8
    Bb = [V.alloc(f"B{i}", 4) for i in range(NB)]
    one = V.alloc("one")
    nR = max(tiles) - 3
    W = [V.alloc(f"W{i}", 4) for i in range(nR)]
    S9 = V.alloc("S9", 4); S7 = V.alloc("S7", 4)
    started = set()
    def mf(T, Af, Bf):
        c = acc[T] if T in started else "0"
        started.add(T)
        a(f"v_mfma_f32_16x16x32_f16 {acc[T]}, {Af}, {Bf}, {c}")
    loads = [(g, r) for g in range(max(tiles) + 1) for r in range(8)]
    def ld(i):
        g, r = loads[i]
        a(f"ds_read_b128 {Bb[i % NB]}, {bA} offset:{448 + 512*g - 64*r}")
    a(f"v_mov_b32 {one}, 1")
    for i in range(NB):
        ld(i)
    for R in range(nR):
        a(f"ds_read2_b64 {W[R]}, {wA} offset0:{64*R} offset1:{64*R+1}")
    extra = []
    for R in range(nR):
        extra.append(("box", R))
    seg3 = {T: [(R, T - R - 4) for R in range(nR) if T - R - 4 >= 0] for T in tiles}
    boxdone = set()
    def box_step(R):
        a(f"v_mfma_f32_16x16x32_f16 {S9}, {W[R]}, {box[0]}, 0")
        a(f"v_mfma_f32_16x16x32_f16 {S7}, {W[R]}, {box[1]}, 0")
    def box_cvt(R):
        for r in range(4):
            a(f"v_cvt_pk_f16_f32 {W[R][r]}, {S9[r]}, {S7[r]}")
        boxdone.add(R)
    slot = {T: i for i, T in enumerate(tiles)}
    def fin(T):
        a(f"ds_write_b128 {exA}, {acc[T]} offset:{EX + slot[T]*4096}")
        a(f"s_mov_b64 exec, 1")
        a(f"ds_add_u32 {mi}, {one} offset:{M_EXC + 4*slot[T]}")
        a(f"s_mov_b64 exec, -1")
    pend_fin = []
    for i, (g, r) in enumerate(loads):
        Bf = Bb[i % NB]
        for T in tiles:
            b = T - g
            if 0 <= b <= 3:
                mf(T, A[8*b + r], Bf)
            if b == 4 and r == 0:
                mf(T, A[32], Bf)
        if i + NB < len(loads):
            ld(i + NB)
        if r == 1 and 1 <= g <= nR:
            box_step(g - 1)
        if r == 4 and 1 <= g <= nR:
            box_cvt(g - 1)
        if r == 6:
            for T in tiles:
                for (R, d) in list(seg3[T]):
                    if R in boxdone:
                        mf(T, W[R], Zf[d]); seg3[T].remove((R, d))
        if r == 2 and pend_fin:
            for T in pend_fin: fin(T)
            pend_fin = []
        if r == 7 and g in tiles:
            assert not seg3[g], (part, g, seg3)
            pend_fin.append(g)
    for T in pend_fin: fin(T)
    V.restore(snap)


def krole(G):
    a, V = G.a, G.V
    lane, l4, l16 = G.lane, G.l4, G.l16
    a.begin()
    a(f"s_lshr_b32 {sT[0]}, {sJ}, 1")
    a(f"s_lshr_b32 {sT[1]}, {sT[0]}, 2")
    a(f"s_lshl_b32 {sT[1]}, {sT[1]}, 3")
    a(f"s_and_b32 {sT[2]}, s2, 7")
    a(f"s_add_u32 {sT[1]}, {sT[1]}, {sT[2]}")
    a(f"s_lshl_b32 {sT[1]}, {sT[1]}, 2")
    a(f"s_and_b32 {sT[0]}, {sT[0]}, 3")
    a(f"s_add_u32 {sSIG}, {sT[1]}, {sT[0]}")
    a(f"s_cmp_eq_u32 {sPART}, 1")
    a(f"s_cselect_b32 {sSIG}, {sSIG}, 127")
    a(f"s_cmp_lt_u32 {sSIG}, 86")
    a(f"s_cselect_b64 {sFFN}, -1, 0")
    a(f"s_cselect_b32 {sSIG}, {sSIG}, 0")
    wd = V.alloc("wd", 16); ga = V.alloc("ga"); t = V.alloc("kt"); t2 = V.alloc("kt2")
    a(f"v_lshrrev_b32 {ga}, 1, {lane}")
    a(f"s_lshl_b32 {sT[0]}, {sC}, 7")
    a(f"v_add_u32 {ga}, {sT[0]}, {ga}")
    a(f"v_mul_u32_u24 {ga}, 2752, {ga}")
    a(f"v_and_b32 {t}, 16, {l16}")
    a(f"s_lshl_b32 {sT[0]}, {sSIG}, 5")
    a(f"v_add3_u32 {ga}, {ga}, {t}, {sT[0]}")
    a(f"s_lshl_b32 {sT[0]}, {sSIG}, 14")
    a(f"s_lshl_b32 {sT[1]}, {sC}, 8")
    a(f"s_add_u32 {sT[0]}, {sT[0]}, {sT[1]}")
    a(f"s_add_u32 {sT[0]}, {sT[0]}, 4096")
    a(f"v_add_u32 {t}, {sT[0]}, {l4}")
    a(f"v_add_u32 {t2}, 0x2000, {t}")
    a(f"s_lshl_b32 {sT[0]}, {sC}, 13")
    a(f"s_add_u32 {sT[0]}, {sT[0]}, {GU}")
    a(f"s_mov_b64 exec, {sFFN}")
    for i in range(4):
        a(f"s_add_u32 m0, {sT[0]}, {1024*i}")
        a(f"global_load_lds_dwordx4 {ga}, {pWG}")
        a(f"s_add_u32 m0, {sT[0]}, {4096 + 1024*i}")
        a(f"global_load_lds_dwordx4 {ga}, {pWU}")
        if i < 3: a(f"v_add_u32 {ga}, {32*2752}, {ga}")
    for f in range(16):
        a(f"global_load_dword {wd[f]}, {t if f < 8 else t2}, {pWD} offset:{(f % 8 - 4) * 1024}")
    a(f"s_mov_b64 exec, -1")
    a.end(False)
    V.release("ga")
    G.prefetch_code()
    a15 = V.alloc("a15"); g4 = V.alloc("g4")
    tA = V.alloc("tA"); p0 = V.alloc("p0"); p2 = V.alloc("p2"); zw = V.alloc("zw"); tl = V.alloc("tl"); tsel = V.alloc("tsel")
    fA = [V.alloc(f"fA{i}") for i in range(5)]
    zA = V.alloc("zA"); bA = V.alloc("bA"); wA = V.alloc("wA"); exA = V.alloc("exA"); mi = V.alloc("kmi")
    box = [V.alloc("box9", 4), V.alloc("box7", 4)]
    sh = V.alloc("sh", 2)
    a(f"v_and_b32 {a15}, 15, {lane}")
    a(f"v_lshrrev_b32 {g4}, 4, {lane}")
    a(f"s_lshr_b32 {sT[0]}, {sC}, 1")
    a(f"s_mul_i32 {sT[0]}, {sT[0]}, {TABP}")
    a(f"s_and_b32 {sT[1]}, {sC}, 1")
    a(f"s_lshl_b32 {sT[1]}, {sT[1]}, 9")
    a(f"s_add_u32 {sT[0]}, {sT[0]}, {sT[1]}")
    a(f"v_and_b32 {t}, 31, {lane}")
    a(f"v_lshrrev_b32 {t2}, 5, {lane}")
    a(f"v_mul_u32_u24 {tA}, {ROWS}, {t}")
    a(f"v_lshl_add_u32 {tA}, {t2}, 4, {tA}")
    a(f"v_add_u32 {tA}, {sT[0]}, {tA}")
    sPZ = sT[2]
    a(f"s_mul_i32 {sPZ}, {sC}, {PZC}")
    a(f"s_add_u32 {sPZ}, {sPZ}, {PZ}")
    a(f"v_lshlrev_b32 {p0}, 5, {t}")
    a(f"v_lshl_add_u32 {p0}, {t2}, 4, {p0}")
    a(f"v_add_u32 {p0}, {sPZ}, {p0}")
    a(f"v_lshlrev_b32 {p2}, 5, {lane}")
    a(f"v_add_u32 {p2}, {sPZ}, {p2}")
    a(f"v_lshlrev_b32 {zw}, 1, {t}")
    a(f"v_lshl_add_u32 {zw}, {t2}, 8, {zw}")
    a(f"v_add_u32 {zw}, {sPZ}, {zw}")
    a(f"v_add_u32 {tl}, {sPZ}, {l4}")
    a(f"v_lshlrev_b32 {t}, 3, {g4}")
    a(f"v_sub_u32 {t}, {a15}, {t}")
    a(f"s_add_u32 {sT[3]}, {sPZ}, 96")
    a(f"v_lshl_add_u32 {fA[0]}, {t}, 2, {sT[3]}")
    for i in range(1, 5):
        a(f"v_add_u32 {fA[i]}, {1024*i}, {fA[0]}")
    a(f"v_sub_u32 {t2}, 15, {t}")
    for bx, lo in ((box[0], 0x1ff << 23), (box[1], 0x7f << 16)):
        a(f"s_mov_b32 {sT[4]}, {lo:#x}")
        a(f"s_mov_b32 {sT[5]}, 0")
        a(f"v_lshrrev_b64 {sh}, {t2}, {sTP[2]}")
        a(f"v_lshl_or_b32 {sh[1]}, {sh[0]}, 15, 0")
        a(f"v_and_b32 {sh[0]}, 0xff, {sh[0]}")
        a(f"v_lshl_or_b32 {sh[0]}, {sh[0]}, 15, {sh[0]}")
        for i in range(4):
            a(f"v_lshrrev_b32 {bx[i]}, {2*i}, {sh[0]}")
            a(f"v_and_b32 {bx[i]}, 0x10001, {bx[i]}")
            a(f"v_mul_u32_u24 {bx[i]}, 0x3c00, {bx[i]}")
    a(f"v_lshlrev_b32 {t}, 2, {g4}")
    a(f"v_sub_u32 {t}, {a15}, {t}")
    a(f"s_add_u32 {sT[3]}, {sPZ}, {ZOFF + 48}")
    a(f"v_lshl_add_u32 {zA}, {t}, 2, {sT[3]}")
    a(f"s_mul_i32 {sT[3]}, {sC}, {UTC}")
    a(f"v_lshlrev_b32 {t}, 4, {g4}")
    a(f"v_add_u32 {t}, {sT[3]}, {t}")
    a(f"v_lshl_add_u32 {bA}, {a15}, 5, {t}")
    a(f"v_add_u32 {bA}, 32, {bA}")
    a(f"v_xor_b32 {wA}, 3, {a15}")
    a(f"v_lshl_add_u32 {wA}, {wA}, 5, {t}")
    a(f"v_add_u32 {wA}, 456, {wA}")
    a(f"s_lshl_b32 {sT[3]}, {sC}, 10")
    a(f"v_lshlrev_b32 {t}, 4, {g4}")
    a(f"v_lshl_add_u32 {exA}, {a15}, 6, {t}")
    a(f"v_add_u32 {exA}, {sT[3]}, {exA}")
    a(f"v_mov_b32 {mi}, {MISC}")
    a(f"v_mov_b32 {tsel}, 0x0c0c0c0c")
    for n, val in ((13, 0x03020c0c), (12, 0x03020302), (6, 0x01000302), (5, 0x01000100)):
        a(f"s_mov_b64 exec, {(1 << n) - 1:#x}")
        a(f"v_mov_b32 {tsel}, {val:#x}")
    a(f"s_mov_b64 exec, -1")
    V.release("sh")
    pub = G.stats("K")
    G.tab("K", pub)
    G.dump_lds("tab")
    Aall = V.alloc("A", 132)
    A = [Aall[4*s:4*s+4] for s in range(33)]
    D = V.alloc("D", 16)
    for st in range(16):
        a(f"ds_read_b128 {A[2*st]}, {tA} offset:{32*ROWS + 32*st}")
        a(f"ds_read_b128 {A[2*st+1]}, {tA} offset:{32*st}")
    a(f"v_mov_b32 {t}, 1")
    a(f"s_mov_b64 exec, 1")
    a(f"ds_add_u32 {mi}, {t} offset:{M_TABF}")
    a(f"s_mov_b64 exec, -1")
    cd = V.alloc("cd", 8); ca = V.alloc("ca")
    a(f"v_lshlrev_b32 {ca}, 5, {lane}")
    a(f"v_add_u32 {ca}, {W_CAND}, {ca}")
    for st in range(16):
        a(f"v_mfma_f32_32x32x16_f16 {D}, {A[2*st]}, {A[2*st+1]}, {D if st else 0}")
    G.stamp(4)
    w = V.alloc("pw", 20)
    nx = V.alloc("nx")
    a.begin()
    a(f"v_cvt_pk_f16_f32 {w[0]}, {D[4]}, {D[4]}")
    a(f"v_cvt_pk_f16_f32 {w[1]}, {D[4]}, {D[4]}")
    a(f"v_cvt_pk_f16_f32 {w[2]}, {D[5]}, {D[4]}")
    a(f"v_cvt_pk_f16_f32 {w[3]}, {D[5]}, {D[5]}")
    a(f"ds_write_b128 {p0}, {w[0:4]} offset:{64 + 1024}")
    a(f"ds_write_b16 {p0}, {w[0]} offset:{64 + 1024 - 4}")
    a(f"v_cvt_pk_f16_f32 {w[4]}, {D[0]}, 0")
    a(f"v_cvt_pk_f16_f32 {w[5]}, {D[1]}, {D[0]}")
    a(f"v_cvt_pk_f16_f32 {w[6]}, {D[2]}, {D[1]}")
    a(f"v_cvt_pk_f16_f32 {w[7]}, {D[3]}, {D[2]}")
    a(f"ds_write_b128 {p0}, {w[4:8]} offset:64")
    a(f"ds_write_b16 {p0}, {w[7]} offset:{64 + 16 + 2}")
    a(f"v_mov_b32_dpp {nx}, {D[8]} wave_rol:1 row_mask:0xf bank_mask:0xf")
    a(f"v_mov_b32_dpp {nx}, {D[6]} wave_shl:1 row_mask:0xf bank_mask:0xf")
    a(f"v_cvt_pk_f16_f32 {w[8]}, {D[6]}, {D[6]}")
    a(f"v_cvt_pk_f16_f32 {w[9]}, {D[6]}, {D[6]}")
    a(f"v_cvt_pk_f16_f32 {w[10]}, {D[6]}, {D[6]}")
    a(f"v_cvt_pk_f16_f32 {w[11]}, {D[7]}, {D[6]}")
    a(f"v_cvt_pk_f16_f32 {w[12]}, {D[7]}, {D[7]}")
    a(f"v_cvt_pk_f16_f32 {w[13]}, {D[7]}, {D[7]}")
    a(f"v_cvt_pk_f16_f32 {w[14]}, {nx}, {D[7]}")
    a(f"v_cvt_pk_f16_f32 {w[15]}, {nx}, {nx}")
    a(f"ds_write_b128 {p2}, {w[8:12]} offset:{64 + 2048}")
    a(f"ds_write_b128 {p2}, {w[12:16]} offset:{64 + 2048 + 16}")
    a(f"ds_write_b16 {p2}, {w[8]} offset:{64 + 2048 - 4}")
    a(f"v_cvt_pk_f16_f32 {w[16]}, {D[8]}, {D[9]}")
    a(f"v_cvt_pk_f16_f32 {w[17]}, {D[10]}, {D[11]}")
    a(f"v_readlane_b32 {sT[0]}, {w[16]}, 0")
    a(f"v_readlane_b32 {sT[1]}, {w[16]}, 1")
    a(f"s_pack_ll_b32_b16 {sT[0]}, {sT[0]}, {sT[1]}")
    a(f"v_perm_b32 {w[18]}, {sT[0]}, {sT[0]}, {tsel}")
    a(f"ds_write_b32 {tl}, {w[18]} offset:{4*1040}")
    a(f"s_mov_b64 exec, -4")
    a(f"ds_write_b16 {zw}, {w[16]} offset:{ZOFF + 56}")
    a(f"s_mov_b64 exec, 0xffffffff")
    a(f"ds_write_b16_d16_hi {zw}, {w[16]} offset:{ZOFF + 56 + 64}")
    a(f"ds_write_b16 {zw}, {w[17]} offset:{ZOFF + 56 + 128}")
    a(f"ds_write_b16_d16_hi {zw}, {w[17]} offset:{ZOFF + 56 + 192}")
    a(f"s_mov_b64 exec, -1")
    a.end()
    V.release("pw", "nx", "D", "p0", "p2", "zw", "tl", "tsel", "tA")
    a(f"global_load_dwordx4 {cd[0:4]}, {ca}, {pWS} sc1")
    a(f"global_load_dwordx4 {cd[4:8]}, {ca}, {pWS} offset:16 sc1")
    for s in range(33):
        o = 32 * (s & 7)
        a(f"ds_read2_b32 {A[s][0:2]}, {fA[s >> 3]} offset0:{o+8} offset1:{o+6}")
        a(f"ds_read2_b32 {A[s][2:4]}, {fA[s >> 3]} offset0:{o+4} offset1:{o+2}")
    G.stamp(5)
    for n in [f"fA{i}" for i in range(5)]:
        V.release(n)
    a(f"s_mov_b32 {sSPIN}, {SPIN}")
    a("s_branch L_CP_CHK")
    a.label("L_CP_RETRY")
    a(f"global_load_dwordx4 {cd[0:4]}, {ca}, {pWS} sc1")
    a(f"global_load_dwordx4 {cd[4:8]}, {ca}, {pWS} offset:16 sc1")
    a.label("L_CP_CHK")
    a(f"v_xor_b32 {t}, {sTAG}, {cd[1]}")
    for k in (3, 5, 7):
        a(f"v_bitop3_b32 {t}, {t}, {cd[k]}, {sTAG} bitop3:0xf6")
    a(f"v_cmp_ne_u32 vcc, 0, {t}")
    a(f"s_cbranch_vccz L_CP_OK")
    a(f"s_sub_u32 {sSPIN}, {sSPIN}, 1")
    a(f"s_cbranch_scc0 L_CP_RETRY")
    a.label("L_CP_OK")
    G.stamp(6)
    a(f"v_max3_u32 {t}, {cd[0]}, {cd[2]}, {cd[4]}")
    a(f"v_max_u32 {t}, {t}, {cd[6]}")
    G.reduce(t, "v_max_u32")
    a(f"v_readlane_b32 {sT[0]}, {t}, 63")
    a(f"s_and_b32 {sT[1]}, {sT[0]}, 0x7ff")
    a(f"s_sub_u32 {sIDX}, 0x7ff, {sT[1]}")
    a(f"s_ashr_i32 {sT[1]}, {sT[0]}, 31")
    a(f"s_not_b32 {sT[1]}, {sT[1]}")
    a(f"s_or_b32 {sT[1]}, {sT[1]}, 0x80000000")
    a(f"s_xor_b32 {sT[0]}, {sT[0]}, {sT[1]}")
    a(f"s_and_b32 {sRB}, {sT[0]}, 0xffff0000")
    a(f"v_mov_b32 {cd[0]}, {sIDX}")
    a(f"v_mov_b32 {cd[1]}, {sRB}")
    a(f"ds_write_b64 {mi}, {cd[0:2]} offset:{M_IDX}")
    a(f"s_cmp_eq_u64 {sFFN}, 0")
    a(f"s_cbranch_scc1 L_NOFFN")
    ffn(G, wd, cd, t, t2, a15, g4, mi)
    a.label("L_NOFFN")
    Zf = [V.alloc(f"Zf{i}", 4) for i in range(4)]
    for d in range(4):
        a(f"ds_read2_b32 {Zf[d][0:2]}, {zA} offset0:{16*d} offset1:{16*d+1}")
        a(f"ds_read2_b32 {Zf[d][2:4]}, {zA} offset0:{16*d+2} offset1:{16*d+3}")
    a("s_waitcnt lgkmcnt(0)")
    G.stamp(7)
    a("s_barrier")
    G.dump_lds("ut")
    V.release("cd", "ca", "wd", "zA")
    a(f"s_cmp_eq_u32 {sPART}, 0")
    a(f"s_cbranch_scc0 L_CONV1")
    conv(G, 0, A, Zf, box, bA, wA, exA, mi)
    G.stamp(8)
    a("s_branch L_FIN")
    a.label("L_CONV1")
    conv(G, 1, A, Zf, box, bA, wA, exA, mi)
    G.stamp(8)


def ffn(G, wd, cd, t, t2, a15, g4, mi):
    a, V = G.a, G.V
    lane, l4, l16 = G.lane, G.l4, G.l16
    snap = V.snapshot()
    xs = cd[2:4]; st = cd[4:6]; xr = cd[6]
    a(f"s_lshl_b32 {sT[0]}, {sIDX}, 10")
    a(f"s_lshl_b32 {sT[1]}, {sC}, 8")
    a(f"s_add_u32 {sT[0]}, {sT[0]}, {sT[1]}")
    a(f"v_add_u32 {t}, {sT[0]}, {l4}")
    a(f"global_load_dword {xr}, {t}, {pU}")
    a(f"s_lshl_b32 {sT[0]}, {sIDX}, 3")
    a(f"s_add_u32 {sT[0]}, {sT[0]}, {W_ST}")
    a(f"v_mov_b32 {t2}, {sT[0]}")
    a(f"global_load_dwordx2 {st}, {t2}, {pWS} sc1")
    a("s_waitcnt vmcnt(2)")
    ta = V.alloc("ta"); Bg = V.alloc("Bg", 32); xa = V.alloc("xa"); xw = V.alloc("xw")
    a(f"v_lshrrev_b32 {ta}, 2, {a15}")
    a(f"v_lshl_add_u32 {ta}, {g4}, 3, {ta}")
    a(f"v_lshlrev_b32 {ta}, 5, {ta}")
    a(f"v_and_b32 {xa}, 3, {lane}")
    a(f"v_lshl_add_u32 {ta}, {xa}, 3, {ta}")
    a(f"s_lshl_b32 {sT[0]}, {sC}, 13")
    a(f"s_add_u32 {sT[0]}, {sT[0]}, {GU}")
    a(f"v_add_u32 {ta}, {sT[0]}, {ta}")
    for m in range(2):
        for s in range(4):
            for hh in range(2):
                r = Bg[16*m + 4*s + 2*hh: 16*m + 4*s + 2*hh + 2]
                a(f"ds_read_b64_tr_b16 {r}, {ta} offset:{4096*m + 1024*s + 128*hh}")
    a(f"s_add_u32 {sT[1]}, {sT[1]}, {MISC + M_XS}")
    a(f"v_add_u32 {xw}, {sT[1]}, {l4}")
    a(f"v_lshlrev_b32 {xa}, 4, {g4}")
    a(f"v_add_u32 {xa}, {sT[1]}, {xa}")
    wp = V.alloc("wp", 16)
    a(f"s_mov_b32 {sT[2]}, 0x05040100")
    a(f"s_mov_b32 {sT[3]}, 0x07060302")
    for i in range(8):
        a(f"v_perm_b32 {wp[i]}, {wd[2*i+1]}, {wd[2*i]}, {sT[2]}")
        a(f"v_perm_b32 {wp[8+i]}, {wd[2*i+1]}, {wd[2*i]}, {sT[3]}")
    fa = V.alloc("fa"); pa = V.alloc("pa")
    a(f"v_lshlrev_b32 {fa}, 4, {a15}")
    a(f"v_add_u32 {fa}, {MISC + M_FP}, {fa}")
    a(f"s_lshl_b32 {sT[2]}, {sC}, 2")
    a(f"v_add_u32 {pa}, {sT[2]}, {fa}")
    oa = V.alloc("oa")
    a(f"v_lshrrev_b32 {oa}, 1, {lane}")
    a(f"s_lshl_b32 {sT[2]}, {sC}, 5")
    a(f"v_add_u32 {oa}, {sT[2]}, {oa}")
    a(f"v_mul_u32_u24 {oa}, {W_FG}, {oa}")
    a(f"v_and_b32 {t}, 16, {l16}")
    a(f"s_lshl_b32 {sT[2]}, {sSIG}, 5")
    a(f"s_add_u32 {sT[2]}, {sT[2]}, {W_FFN}")
    a(f"v_add3_u32 {oa}, {oa}, {t}, {sT[2]}")
    a(f"s_mov_b32 {sSPIN}, {SPIN}")
    a("s_branch L_FS_CHK")
    a.label("L_FS_RETRY")
    a(f"global_load_dwordx2 {st}, {t2}, {pWS} sc1")
    a.label("L_FS_CHK")
    a(f"v_cmp_ne_u32 vcc, {sTAG}, {st[1]}")
    a(f"s_cbranch_vccz L_FS_OK")
    a(f"s_sub_u32 {sSPIN}, {sSPIN}, 1")
    a(f"s_cbranch_scc0 L_FS_RETRY")
    a.label("L_FS_OK")
    a(f"v_and_b32 {st[1]}, 0xffff0000, {st[0]}")
    a(f"v_lshlrev_b32 {st[0]}, 16, {st[0]}")
    a(f"v_rcp_f32 {st[1]}, {st[1]}")
    a(f"v_lshlrev_b32 {xs[0]}, 16, {xr}")
    a(f"v_and_b32 {xs[1]}, 0xffff0000, {xr}")
    a(f"v_pk_add_f32 {xs}, {xs}, {st} op_sel_hi:[1,0] neg_lo:[0,1] neg_hi:[0,1]")
    a(f"v_cvt_pk_bf16_f32 {xs[0]}, 0, {xs[0]}")
    a(f"v_cvt_pk_bf16_f32 {xs[1]}, 0, {xs[1]}")
    a(f"v_pk_mul_f32 {xs}, {xs}, {st} op_sel:[0,1] op_sel_hi:[1,1]")
    a(f"v_cvt_pk_bf16_f32 {xr}, {xs[0]}, {xs[1]}")
    a(f"ds_write_b32 {xw}, {xr}")
    Ax = wd; dg = V.alloc("dg", 4); du = V.alloc("du", 4)
    for s in range(4):
        a(f"ds_read_b128 {Ax[4*s:4*s+4]}, {xa} offset:{64*s}")
    for s in range(4):
        a(f"v_mfma_f32_16x16x32_bf16 {dg}, {Ax[4*s:4*s+4]}, {Bg[4*s:4*s+4]}, {dg if s else 0}")
        a(f"v_mfma_f32_16x16x32_bf16 {du}, {Ax[4*s:4*s+4]}, {Bg[16+4*s:20+4*s]}, {du if s else 0}")
    a(f"v_mov_b32 {t}, 1")
    a(f"s_mov_b64 exec, 0xffff")
    a(f"ds_write_b32 {pa}, {dg[0]}")
    a(f"ds_write_b32 {pa}, {du[0]} offset:256")
    a(f"s_mov_b64 exec, 1")
    a(f"ds_add_u32 {mi}, {t} offset:{M_FCNT}")
    a(f"s_mov_b64 exec, -1")
    a(f"s_mov_b32 {sSPIN}, {SPIN}")
    a.label("L_FC")
    a(f"ds_read_b32 {t}, {mi} offset:{M_FCNT}")
    a(f"ds_read_b128 {dg}, {fa}")
    a(f"ds_read_b128 {du}, {fa} offset:256")
    a(f"v_cmp_ne_u32 vcc, 4, {t}")
    a(f"s_cbranch_vccz L_FC_OK")
    a(f"s_sub_u32 {sSPIN}, {sSPIN}, 1")
    a(f"s_cbranch_scc0 L_FC")
    a.label("L_FC_OK")
    a(f"v_pk_add_f32 {dg[0:2]}, {dg[0:2]}, {dg[2:4]}")
    a(f"v_pk_add_f32 {du[0:2]}, {du[0:2]}, {du[2:4]}")
    a(f"v_add_f32 {dg[0]}, {dg[0]}, {dg[1]}")
    a(f"v_add_f32 {du[0]}, {du[0]}, {du[1]}")
    a(f"v_cvt_pk_bf16_f32 {dg[0]}, 0, {dg[0]}")
    a(f"v_cvt_pk_bf16_f32 {du[0]}, 0, {du[0]}")
    a(f"v_mul_f32 {dg[1]}, {LOG2E | 0x80000000:#x}, {dg[0]}")
    a(f"v_exp_f32 {dg[1]}, {dg[1]}")
    a(f"v_add_f32 {dg[1]}, 1.0, {dg[1]}")
    a(f"v_rcp_f32 {dg[1]}, {dg[1]}")
    a(f"v_mul_f32 {dg[0]}, {dg[0]}, {dg[1]}")
    a(f"v_cvt_pk_bf16_f32 {dg[0]}, 0, {dg[0]}")
    a(f"v_mul_f32 {dg[0]}, {dg[0]}, {du[0]}")
    a(f"v_mov_b32_dpp {dg[1]}, {dg[0]} quad_perm:[1,0,3,2] row_mask:0xf bank_mask:0xf")
    a(f"v_cvt_pk_bf16_f32 {dg[0]}, {dg[0]}, {dg[1]}")
    for i in range(8):
        a(f"v_readlane_b32 {sT[i]}, {dg[0]}, {2*i}")
    y = Ax[0:4]
    a(f"v_mov_b32 {y[1]}, {sTAG}")
    a(f"v_mov_b32 {y[3]}, {sTAG}")
    for i in range(8):
        a(f"v_dot2_f32_bf16 {y[0]}, {wp[i]}, {sT[i]}, {y[0] if i else 0}")
        a(f"v_dot2_f32_bf16 {y[2]}, {wp[8+i]}, {sT[i]}, {y[2] if i else 0}")
    a(f"global_store_dwordx4 {oa}, {y}, {pWS} sc1")
    V.restore(snap)
```

```python
import sys, os
sys.path.insert(0, os.path.dirname(__file__))
from asmlib import Asm, Regs, Reg

NAME = "recurrent_scan__ssm_conv_s4d__moe_arch_mod__prompt"
REF = f"cdna_kernels/{NAME}.s.ref"

TABP, ROWS = 55120, 1040
UTC = 4608
EX = 18432
PZ, PZC, ZOFF = 110240, 4672, 4288
GU = 128928
MISC = 161696
M_KEY, M_CNT, M_TABF, M_EXC, M_IDX, M_R, M_FCNT, M_INV = 0, 4, 8, 12, 32, 36, 40, 48
M_FP = 64
M_XS = 576
LDS = 163840
assert MISC + M_XS + 1024 <= LDS
W_ST, W_CAND, W_FFN, W_FG = 4096, 20480, 24576, 3072
W_DUMP = 1 << 20
W_TS = 64 << 20
SPIN = 1 << 16
LOG2E = 0x3fb8aa3b
INV2PI = 0x3e22f983

S = lambda a, n=1: Reg("s", a, n)
pU, pLA, pAI, pCR, pCI, pLDT, pDSK = S(4, 2), S(6, 2), S(8, 2), S(10, 2), S(12, 2), S(14, 2), S(16, 2)
pWR, pWG, pWU, pWD, pOUT, pDBG, pWS = S(20, 2), S(22, 2), S(24, 2), S(26, 2), S(28, 2), S(30, 2), S(32, 2)
sLDT, sDSK = S(34, 2), S(36, 2)
sE, sTAG, sW, sC, sG, sPART, sJ = S(38), S(39), S(40), S(41), S(42), S(43), S(44)
sSEL, sROWK, sSIG, sFFN = S(45), S(46), S(47), S(48, 2)
sT = [S(50 + i) for i in range(10)]
sTP = [S(50 + 2 * i, 2) for i in range(5)]
sIDX, sRB, sSPIN = S(60), S(61), S(62)
sD = S(64, 4)
sDT = S(68, 2)
sTS = S(72, 24)
sX = [S(96 + i) for i in range(4)]

OWN = {0: [0, 3, 4, 7], 1: [1, 2, 5, 6]}


class Gen:
    def __init__(self, dump=None, ts=False, opts=None):
        self.a = Asm()
        self.dump = dump
        self.ts = ts
        self.o = opts or {}
        self.V = Regs("v", 1, 256)
        self.nts = 0

    def stamp(self, i):
        if self.ts:
            self.a(f"s_memtime {sTS[2*i:2*i+2]}")

    def reduce(self, v, op="v_add_f32"):
        a = self.a
        for m in ("row_shr:1 row_mask:0xf", "row_shr:2 row_mask:0xf", "row_shr:4 row_mask:0xf", "row_shr:8 row_mask:0xf",
                  "row_bcast:15 row_mask:0xa", "row_bcast:31 row_mask:0xc"):
            a(f"{op}_dpp {v}, {v}, {v} {m} bank_mask:0xf")

    def cmul(self, r, x, y):
        a = self.a
        a(f"v_pk_mul_f32 {r}, {x}, {y} op_sel_hi:[1,0]")
        a(f"v_pk_fma_f32 {r}, {x}, {y}, {r} op_sel:[1,1,0] op_sel_hi:[0,1,1] neg_lo:[1,0,0]")

    def spin_begin(self, name):
        a = self.a
        a(f"s_mov_b32 {sSPIN}, {SPIN}")
        a.label(name)

    def spin_end(self, name):
        a = self.a
        done = name + "_d"
        a(f"s_cbranch_scc1 {done}")
        a(f"s_sub_u32 {sSPIN}, {sSPIN}, 1")
        a(f"s_cbranch_scc0 {name}")
        a.label(done)

    def prologue(self):
        a, V = self.a, self.V
        self.stamp(0)
        a("s_cmp_ge_u32 s2, 0x100")
        a("s_cbranch_scc1 L_EXIT")
        a("s_load_dwordx16 s[4:19], s[0:1], 0")
        a("s_load_dwordx2 s[32:33], s[0:1], 112")
        a("s_load_dwordx8 s[20:27], s[0:1], 64")
        a("s_load_dwordx4 s[28:31], s[0:1], 96")
        self.lane = lane = V.alloc("lane")
        self.l4 = l4 = V.alloc("l4")
        self.l16 = l16 = V.alloc("l16")
        t0 = V.alloc("t0"); t1 = V.alloc("t1")
        self.x = x = V.alloc("x", 4); self.wr = wr = V.alloc("wr", 4); self.par = par = V.alloc("par", 4)
        a(f"v_lshrrev_b32 {t0}, 6, v0")
        a(f"v_and_b32 {lane}, 63, v0")
        a(f"v_readfirstlane_b32 {sW}, {t0}")
        a(f"s_lshr_b32 {sJ}, s2, 3")
        a(f"s_and_b32 {sG}, s2, 7")
        a(f"s_lshl_b32 {sG}, {sG}, 4")
        a(f"s_lshr_b32 {sT[0]}, {sJ}, 1")
        a(f"s_add_u32 {sG}, {sG}, {sT[0]}")
        a(f"s_and_b32 {sPART}, {sJ}, 1")
        a(f"s_lshl_b32 {sT[1]}, s2, 13")
        a(f"v_lshlrev_b32 {t0}, 4, v0")
        a(f"v_add_u32 {t0}, {sT[1]}, {t0}")
        a(f"v_lshlrev_b32 {l4}, 2, {lane}")
        a(f"v_lshlrev_b32 {l16}, 4, {lane}")
        a(f"s_and_b32 {sC}, {sW}, 3")
        a(f"s_lshl_b32 {sT[2]}, {sG}, 2")
        a(f"s_add_u32 {sT[2]}, {sT[2]}, {sC}")
        a(f"s_lshl_b32 {sT[2]}, {sT[2]}, 8")
        a(f"v_add_u32 {t1}, {sT[2]}, {l4}")
        a(f"s_lshl_b32 {sT[3]}, {sG}, 3")
        a(f"s_lshl_b32 {sT[4]}, s2, 3")
        a(f"s_add_u32 {sT[4]}, {sT[4]}, {sW}")
        a(f"s_sub_u32 {sROWK}, 0x7ff, {sT[4]}")
        z = V.alloc("z"); t2 = V.alloc("t2")
        a(f"v_mov_b32 {z}, 0")
        a(f"s_mul_i32 {sT[5]}, {sC}, {PZC}")
        a(f"s_add_u32 {sT[5]}, {sT[5]}, {PZ}")
        a(f"s_cmp_lt_u32 {sW}, 4")
        a(f"s_cselect_b32 {sT[5]}, {MISC}, {sT[5]}")
        a(f"v_add_u32 {t2}, {sT[5]}, {l4}")
        a(f"ds_write_b32 {t2}, {z}")
        a("s_waitcnt lgkmcnt(0)")
        a(f"global_load_dwordx4 {x}, {t0}, {pU}")
        a(f"s_load_dword {sE}, {pWS}, 0")
        a(f"s_load_dwordx2 {sLDT}, {pLDT}, {sT[3]}")
        a(f"s_load_dwordx2 {sDSK}, {pDSK}, {sT[3]}")
        a(f"global_load_dwordx4 {wr}, {l16}, {pWR}")
        for i, p in enumerate((pLA, pAI, pCR, pCI)):
            a(f"global_load_dword {par[i]}, {t1}, {p}")
        a("s_barrier")
        V.release("t0", "t1", "t2", "z")
        a(f"s_cmp_lt_u32 {sW}, 4")
        a("s_cbranch_scc0 L_KROLE")

    def prefetch_code(self):
        a, V = self.a, self.V
        t = V.alloc("pf")
        a(f"s_getpc_b64 {sTP[0]}")
        a.label(lab := a.newlabel("L_PC"))
        a(f"s_sub_u32 {sTP[0][0]}, {sTP[0][0]}, {lab}-L_BEGIN")
        a(f"s_subb_u32 {sTP[0][1]}, {sTP[0][1]}, 0")
        a(f"s_lshl_b32 {sT[2]}, {sW}, 12")
        a(f"v_lshlrev_b32 {t}, 6, {self.lane}")
        a(f"v_add_u32 {t}, {sT[2]}, {t}")
        a(f"v_min_u32 {t}, L_END-L_BEGIN-4, {t}")
        a(f"global_load_dword {t}, {t}, {sTP[0]}")

    def stats(self, role):
        a, V = self.a, self.V
        x, wr = self.x, self.wr
        acc = V.alloc("acc"); xf = V.alloc("xf", 8); mean = V.alloc("mean"); negm = V.alloc("negm")
        s2 = V.alloc("s2", 2); pk = V.alloc("pk", 2); ad = V.alloc("ad"); t = V.alloc("st")
        one = sT[0]
        a(f"s_mul_i32 {sTAG}, {sE}, 0x9E3779B1")
        a(f"s_add_u32 {sTAG}, {sTAG}, 0x7F4A7C15")
        a(f"s_mov_b32 {one}, 0x3f803f80")
        a(f"s_lshl_b32 {sT[1]}, {sROWK}, 3")
        a(f"s_sub_u32 {sT[1]}, {W_ST + 2047*8}, {sT[1]}")
        a(f"v_mov_b32 {ad}, {sT[1]}")
        a(f"v_mov_b32 {pk[1]}, {sTAG}")
        a.begin()
        a(f"v_dot2_f32_bf16 {acc}, {x[0]}, {one}, 0")
        for i in range(1, 4):
            a(f"v_dot2_f32_bf16 {acc}, {x[i]}, {one}, {acc}")
        self.stamp(1)
        self.reduce(acc)
        a(f"v_mul_f32 {mean}, 0x3b000000, {acc}")
        a(f"v_cvt_pk_bf16_f32 {negm}, 0, -{mean}")
        a(f"v_readlane_b32 {sT[2]}, {negm}, 63")
        for i in range(4):
            a(f"v_lshlrev_b32 {xf[2*i]}, 16, {x[i]}")
            a(f"v_and_b32 {xf[2*i+1]}, 0xffff0000, {x[i]}")
        a(f"v_add_f32 {mean}, {mean}, {negm}")
        for i in range(4):
            a(f"v_pk_add_f32 {xf[2*i:2*i+2]}, {xf[2*i:2*i+2]}, {sTP[1]} op_sel_hi:[1,0]")
        a(f"v_pk_mul_f32 {s2}, {xf[0:2]}, {xf[0:2]}")
        for i in range(1, 4):
            a(f"v_pk_fma_f32 {s2}, {xf[2*i:2*i+2]}, {xf[2*i:2*i+2]}, {s2}")
        a(f"v_add_f32 {acc}, {s2[0]}, {s2[1]}")
        self.reduce(acc)
        a(f"v_mul_f32 {acc}, 0x3b000000, {acc}")
        a(f"v_fma_f32 {acc}, -{mean}, {mean}, {acc}")
        a(f"v_max_f32 {acc}, 0, {acc}")
        a(f"v_cvt_pk_bf16_f32 {acc}, 0, {acc}")
        a(f"v_add_f32 {acc}, 0x3727c5ac, {acc}")
        a(f"v_cvt_pk_bf16_f32 {acc}, 0, {acc}")
        a(f"v_sqrt_f32 {acc}, {acc}")
        a(f"v_cvt_pk_bf16_f32 {pk[0]}, -{negm}, {acc}")
        for i in range(8):
            a(f"v_cvt_pk_bf16_f32 {xf[i]}, 0, {xf[i]}")
        a(f"s_mov_b32 exec_lo, 0")
        a(f"s_mov_b32 exec_hi, 0x80000000")
        a(f"global_store_dwordx2 {ad}, {pk}, {pWS} sc1")
        a(f"s_mov_b64 exec, -1")
        a(f"v_and_b32 {t}, 0xffff0000, {pk[0]}")
        a(f"v_rcp_f32 {t}, {t}")
        a(f"v_readlane_b32 {sT[4]}, {t}, 63")
        for i in range(4):
            a(f"v_pk_mul_f32 {xf[2*i:2*i+2]}, {xf[2*i:2*i+2]}, {sTP[2]} op_sel_hi:[1,0]")
        for i in range(4):
            a(f"v_cvt_pk_bf16_f32 {x[i]}, {xf[2*i]}, {xf[2*i+1]}")
        a(f"v_dot2_f32_bf16 {acc}, {x[0]}, {wr[0]}, 0")
        for i in range(1, 4):
            a(f"v_dot2_f32_bf16 {acc}, {x[i]}, {wr[i]}, {acc}")
        self.reduce(acc)
        a(f"v_cvt_pk_bf16_f32 {acc}, 0, {acc}")
        a(f"v_readlane_b32 {sT[6]}, {acc}, 63")
        a(f"s_ashr_i32 {sT[7]}, {sT[6]}, 31")
        a(f"s_or_b32 {sT[7]}, {sT[7]}, 0x80000000")
        a(f"s_xor_b32 {sT[6]}, {sT[6]}, {sT[7]}")
        a(f"s_and_b32 {sT[6]}, {sT[6]}, 0xffff0000")
        a(f"s_or_b32 {sT[6]}, {sT[6]}, {sROWK}")
        a(f"v_mov_b32 {t}, {sT[6]}")
        a(f"v_mov_b32 {mean}, {MISC}")
        a(f"v_mov_b32 {negm}, 1")
        a(f"s_lshl_b32 {sT[1]}, s2, 3")
        a(f"s_add_u32 {sT[1]}, {sT[1]}, {W_CAND}")
        a(f"v_mov_b32 {ad}, {sT[1]}")
        a(f"s_mov_b64 exec, 1")
        a(f"ds_max_u32 {mean}, {t} offset:{M_KEY}")
        a(f"ds_add_rtn_u32 {negm}, {mean}, {negm} offset:{M_CNT}")
        a(f"ds_read_b32 {pk[0]}, {mean} offset:{M_KEY}")
        a(f"s_mov_b64 exec, -1")
        a.end()
        self.stamp(2)
        def publish():
            a(f"v_readfirstlane_b32 {sT[0]}, {negm}")
            a(f"s_cmp_eq_u32 {sT[0]}, 7")
            a(f"s_cselect_b64 exec, 1, 0")
            a(f"global_store_dwordx2 {ad}, {pk}, {pWS} sc1")
            a(f"s_mov_b64 exec, -1")
            V.release("negm", "pk", "ad")
        V.release("acc", "xf", "mean", "s2", "st", "x", "wr")
        return publish

    def tab(self, role, publish):
        a, V = self.a, self.V
        par = self.par
        h = 0 if role == "U" else 1
        sel = sT[8]
        la = V.alloc("la"); C = V.alloc("C", 2); dt = V.alloc("dt", 2); mx = V.alloc("mx"); t = V.alloc("tt")
        aa = la; bb = V.alloc("bb")
        e1 = V.alloc("e1", 2); e8 = V.alloc("e8", 2); e256 = V.alloc("e256", 2); F2 = V.alloc("F2", 2)
        ad = V.alloc("tad")
        cv = [V.alloc(f"cv{i}") for i in range(6)]
        ncv = [0]
        def put(row, r, g):
            c = cv[ncv[0] % 6]; ncv[0] += 1
            if g:
                a(f"v_cvt_pk_f16_f32 {c}, {r[0]}, -{r[1]}")
            else:
                a(f"v_cvt_pk_f16_f32 {c}, {r[0]}, {r[1]}")
            a(f"ds_write_b32 {ad}, {c} offset:{row*ROWS}")
        a.begin()
        a(f"s_lshl_b32 {sT[9]}, {sC}, 4")
        a(f"s_lshr_b64 {sTP[1]}, {sLDT}, {sT[9]}")
        a(f"s_lshl_b32 {sT[2]}, {sT[2]}, 16")
        a(f"v_mov_b32 {dt[0]}, {sT[2]}")
        a(f"v_mul_f32 {dt[0]}, {LOG2E:#x}, {dt[0]}")
        a(f"v_exp_f32 {dt[0]}, {dt[0]}")
        if h == 0:
            a(f"v_lshlrev_b32 {la}, 16, {par[0]}")
            a(f"v_lshlrev_b32 {bb}, 16, {par[1]}")
            a(f"v_lshlrev_b32 {C[0]}, 16, {par[2]}")
            a(f"v_lshlrev_b32 {C[1]}, 16, {par[3]}")
        else:
            a(f"v_and_b32 {la}, 0xffff0000, {par[0]}")
            a(f"v_and_b32 {bb}, 0xffff0000, {par[1]}")
            a(f"v_and_b32 {C[0]}, 0xffff0000, {par[2]}")
            a(f"v_and_b32 {C[1]}, 0xffff0000, {par[3]}")
        a(f"v_mul_f32 {la}, {LOG2E:#x}, {la}")
        a(f"v_exp_f32 {la}, {la}")
        a(f"v_cvt_pk_bf16_f32 {dt[0]}, 0, {dt[0]}")
        a(f"v_cvt_pk_bf16_f32 {la}, 0, {la}")
        a.end()
        publish()
        a.begin()
        a(f"s_lshr_b32 {sT[0]}, {sC}, 1")
        a(f"s_mul_i32 {sT[0]}, {sT[0]}, {TABP}")
        a(f"s_and_b32 {sT[1]}, {sC}, 1")
        a(f"s_lshl_b32 {sT[1]}, {sT[1]}, 9")
        a(f"s_add_u32 {sT[0]}, {sT[0]}, {sT[1]}")
        if h: a(f"s_add_u32 {sT[0]}, {sT[0]}, 256")
        a(f"v_add_u32 {ad}, {sT[0]}, {self.l4}")
        a(f"v_mul_f32 {aa}, {la}, {dt[0]}")
        a(f"v_mul_f32 {aa}, {LOG2E | 0x80000000:#x}, {aa}")
        a(f"v_mul_f32 {bb}, {bb}, {dt[0]}")
        a(f"v_mul_f32 {bb}, {INV2PI:#x}, {bb}")
        a(f"v_and_b32 {par[2]}, 0x7fff7fff, {par[2]}")
        a(f"v_and_b32 {par[3]}, 0x7fff7fff, {par[3]}")
        a(f"v_pk_max_u16 {mx}, {par[2]}, {par[3]}")
        a(f"v_lshlrev_b32 {t}, 16, {mx}")
        a(f"v_max_u32 {mx}, {mx}, {t}")
        def base(e, k):
            tm = par[0]; tf = par[1]
            if k == 1:
                a(f"v_exp_f32 {tm}, {aa}")
                a(f"v_fract_f32 {tf}, {bb}")
            else:
                lit = {8: "0x41000000", 256: "0x43800000"}[k]
                a(f"v_mul_f32 {tm}, {lit}, {aa}")
                a(f"v_mul_f32 {tf}, {lit}, {bb}")
                a(f"v_exp_f32 {tm}, {tm}")
                a(f"v_fract_f32 {tf}, {tf}")
            a(f"v_cos_f32 {e[0]}, {tf}")
            a(f"v_sin_f32 {e[1]}, {tf}")
            a(f"v_pk_mul_f32 {e}, {e}, {par[0:2]} op_sel_hi:[1,0]")
        base(e8, 8)
        self.reduce(mx, "v_max_u32")
        a(f"v_and_b32 {mx}, 0xffff0000, {mx}")
        a(f"v_mul_f32 {mx}, {mx}, {dt[0]}")
        a(f"v_readlane_b32 {sT[2]}, {mx}, 63")
        a(f"s_lshr_b32 {sT[2]}, {sT[2]}, 23")
        a(f"s_max_u32 {sT[2]}, {sT[2]}, 10")
        a(f"s_min_u32 {sT[2]}, {sT[2]}, 254")
        a(f"s_sub_u32 {sT[4]}, 261, {sT[2]}")
        a(f"s_lshl_b32 {sT[4]}, {sT[4]}, 23")
        a(f"s_sub_u32 {sT[6]}, {sT[2]}, 6")
        a(f"s_lshl_b32 {sT[6]}, {sT[6]}, 23")
        a(f"v_pk_mul_f32 {C}, {C}, {dt} op_sel_hi:[1,0]")
        base(e1, 1)
        base(e256, 256)
        a(f"v_mov_b32 {t}, 0x3c00")
        a(f"ds_write_b32 {ad}, {t}")
        put(1, e8, False)
        self.cmul(F2, e8, e8)
        put(2, F2, False)
        Fa = [V.alloc(f"Fa{i}", 2) for i in range(2)]; Fb = [V.alloc(f"Fb{i}", 2) for i in range(2)]
        pe, po = F2, e8
        G = [C] + [V.alloc(f"G{i}", 2) for i in range(1, 8)]
        H = [V.alloc(f"H{i}", 2) for i in range(4)]
        def gsteps():
            a(f"v_pk_mul_f32 {C}, {C}, {sTP[2]} op_sel_hi:[1,0]"); put(32, C, True); yield
            for i in range(1, 8):
                self.cmul(G[i], G[i-1], e1); put(32 + i, G[i], True); yield
            self.cmul(H[0], G[0], e256); put(40, H[0], True); yield
            self.cmul(H[1], G[4], e256); put(44, H[1], True); yield
            self.cmul(H[2], G[2], e256); put(41, H[2], True); yield
            self.cmul(H[3], G[6], e256); put(45, H[3], True); yield
            self.cmul(G[1], H[0], e256); put(42, G[1], True); yield
            self.cmul(G[3], H[1], e256); put(43, G[3], True); yield
            self.cmul(G[5], G[1], e256); put(46, G[5], True); yield
            self.cmul(G[7], G[3], e256); put(47, G[7], True); yield
            p = G[5]
            for i, q in enumerate((H[0], H[1], H[2], H[3], G[2])):
                self.cmul(q, p, e256); put(48 + i, q, True); p = q; yield
        gs = gsteps()
        for k in range(3, 32):
            if k & 1:
                r = Fb[(k >> 1) & 1]; self.cmul(r, po, F2); po = r
            else:
                r = Fa[(k >> 1) & 1]; self.cmul(r, pe, F2); pe = r
            put(k, r, False)
            if k >= 9: next(gs, None)
        for _ in gs: pass
        if role == "K":
            a(f"s_lshl_b32 {sT[0]}, {sC}, 2")
            a(f"s_add_u32 {sT[0]}, {sT[0]}, {MISC + M_INV}")
            a(f"v_mov_b32 {t}, {sT[0]}")
            a(f"v_mov_b32 {mx}, {sT[6]}")
            a(f"ds_write_b32 {t}, {mx}")
        a.end()
        for n in ["la", "C", "dt", "mx", "tt", "bb", "e1", "e8", "e256", "F2", "tad", "par"] + [f"cv{i}" for i in range(6)] + \
                 [f"Fa{i}" for i in range(2)] + [f"Fb{i}" for i in range(2)] + [f"G{i}" for i in range(1, 8)] + [f"H{i}" for i in range(4)]:
            V.release(n)
        a("s_waitcnt lgkmcnt(0)")
        self.stamp(3)
        a("s_barrier")

    def dump_lds(self, tag):
        if self.dump == tag:
            self.a("s_branch L_DUMP")
            self.a.label(self.a.newlabel("L_dead"))

    def emit_dump(self):
        a = self.a
        a.label("L_DUMP")
        a("s_mov_b64 exec, -1")
        a("s_waitcnt vmcnt(0) lgkmcnt(0)")
        a("s_barrier")
        a("v_lshlrev_b32 v1, 4, v0")
        a(f"s_mul_i32 s50, s2, {LDS}")
        a(f"s_add_u32 s50, s50, {W_DUMP}")
        a("v_add_u32 v2, s50, v1")
        for i in range(20):
            a("ds_read_b128 v[4:7], v1")
            a("global_store_dwordx4 v2, v[4:7], s[32:33]")
            a("v_add_u32 v1, 0x2000, v1")
            a("v_add_u32 v2, 0x2000, v2")
        a("s_branch L_FIN")

    def finish(self):
        a = self.a
        a.label("L_FIN")
        if self.ts:
            self.stamp(11)
            a("s_mov_b64 exec, -1")
            a("s_waitcnt lgkmcnt(0)")
            a("v_mov_b32 v1, 0")
            for i in range(12):
                a(f"v_writelane_b32 v1, {sTS[2*i]}, {i}")
            a(f"s_lshl_b32 s50, s2, 3")
            a(f"s_add_u32 s50, s50, {sW}")
            a(f"s_lshl_b32 s50, s50, 6")
            a(f"s_add_u32 s50, s50, {W_TS}")
            a("v_and_b32 v2, 63, v0")
            a("v_lshlrev_b32 v2, 2, v2")
            a("v_add_u32 v2, s50, v2")
            a("s_mov_b64 exec, 0xffff")
            a("global_store_dword v2, v1, s[32:33]")
        a.label("L_EXIT")
        a("s_endpgm")
        a.label("L_END")

    def build(self):
        from gen_roles import urole, krole
        a = self.a
        a.label("L_BEGIN")
        self.prologue()
        snap = self.V.snapshot()
        urole(self)
        a("s_branch L_FIN")
        self.V.restore(snap)
        a.label("L_KROLE")
        krole(self)
        if self.dump:
            a("s_branch L_FIN")
            self.emit_dump()
        self.finish()
        body = a.text()
        ref = open(REF).read()
        head = ref[:ref.index(f"{NAME}_kernel:") + len(f"{NAME}_kernel:")]
        head = head.replace("; @launch grid=(4096,1,1) block=(256,1,1) lds=0", f"; @launch grid=(256,1,1) block=(512,1,1) lds={LDS}")
        foot = ref[ref.index('.section .rodata,"a"'):]
        nv = (self.V.high + 3) // 4 * 4
        foot = foot.replace(".amdhsa_next_free_vgpr 256", f".amdhsa_next_free_vgpr {nv}").replace(".amdhsa_accum_offset 256", f".amdhsa_accum_offset {nv}")
        return head + "\n" + body + "\n" + foot


if __name__ == "__main__":
    import argparse
    p = argparse.ArgumentParser()
    p.add_argument("-o", default=f"cdna_kernels/{NAME}.s")
    p.add_argument("--dump", default=None)
    p.add_argument("--ts", action="store_true")
    p.add_argument("--opt", action="append", default=[])
    g = p.parse_args()
    opts = dict((o.split("=") + ["1"])[:2] for o in g.opt)
    gen = Gen(g.dump, g.ts, opts)
    txt = gen.build()
    open(g.o, "w").write(txt)
    print("written", g.o, "vgprs", gen.V.high, "lines", txt.count("\n"))
```

```python
from gen import *


def silu_rb(G, out, x, tmp):
    a = G.a
    n = x.n
    a(f"s_mov_b32 {sX[0]}, {LOG2E | 0x80000000:#x}")
    for i in range(0, n, 2):
        a(f"v_pk_mul_f32 {tmp[i:i+2]}, {x[i:i+2]}, {Reg('s', sX[0].b, 2)} op_sel_hi:[1,0]")
    for i in range(n):
        a(f"v_exp_f32 {tmp[i]}, {tmp[i]}")
    for i in range(0, n, 2):
        a(f"v_pk_add_f32 {tmp[i:i+2]}, {tmp[i:i+2]}, 1.0 op_sel_hi:[1,0]")
    for i in range(n):
        a(f"v_rcp_f32 {tmp[i]}, {tmp[i]}")
    for i in range(0, n, 2):
        a(f"v_pk_mul_f32 {tmp[i:i+2]}, {tmp[i:i+2]}, {x[i:i+2]}")
    for i in range(n):
        a(f"v_cvt_pk_bf16_f32 {out[i]}, 0, {tmp[i]}")


def urole(G):
    a, V = G.a, G.V
    lane, l4, l16 = G.lane, G.l4, G.l16
    sTile = [S(18), S(19), S(3), S(63)]
    sNT = S(70)
    ao = [V.alloc(f"ao{i}") for i in range(4)]
    to = [V.alloc(f"to{i}") for i in range(4)]
    uoa = [V.alloc(f"uoa{i}") for i in range(4)]
    tq = V.alloc("tq"); uq = V.alloc("uq"); up = V.alloc("up"); mi = V.alloc("mi"); r64 = V.alloc("r64")
    a15 = V.alloc("a15"); g4 = V.alloc("g4"); ca = V.alloc("ca"); tg = V.alloc("tg", 2)
    wda = V.alloc("wda", 2); t = V.alloc("ut"); wd = V.alloc("wd", 16)
    a(f"v_mov_b32 {t}, 0")
    a(f"v_add_u32 {mi}, {MISC}, {l4}")
    a(f"ds_write_b32 {mi}, {t}")
    G.stage_addrs()
    for i, tt in enumerate((0, 3, 4, 7)):
        a(f"s_xor_b32 {sTile[i]}, {sPART}, {tt}")
    a(f"s_lshl_b32 {sT[0]}, {sW}, 2")
    a(f"s_lshr_b32 {sT[0]}, 0x6521, {sT[0]}")
    a(f"s_and_b32 {sT[0]}, {sT[0]}, 15")
    a(f"s_xor_b32 {sNT}, {sT[0]}, {sPART}")
    a(f"v_and_b32 {a15}, 15, {lane}")
    a(f"v_lshrrev_b32 {g4}, 4, {lane}")
    a(f"s_lshl_b32 {sT[1]}, {sW}, 6")
    a(f"v_lshl_add_u32 {r64}, {a15}, 2, {g4}")
    a(f"v_add_u32 {r64}, {sT[1]}, {r64}")
    a(f"s_lshl_b32 {sT[2]}, {sG}, 3")
    a(f"s_lshl_b32 {sT[4]}, {sG}, 15")
    a(f"s_add_u32 {sT[4]}, {sT[4]}, {W_T}")
    a(f"s_lshl_b32 {sT[5]}, {sW}, 8")
    a(f"s_add_u32 {sT[5]}, {sT[5]}, {sT[4]}")
    a(f"v_lshlrev_b32 {tq}, 10, {g4}")
    a(f"v_lshl_add_u32 {tq}, {a15}, 4, {tq}")
    a(f"v_lshlrev_b32 {uq}, 10, {r64}")
    a(f"v_lshlrev_b32 {up}, 1, {r64}")
    for i in range(4):
        a(f"s_lshl_b32 {sT[3]}, {sTile[i]}, 18")
        a(f"s_add_u32 {sT[3]}, {sT[3]}, {sT[2]}")
        a(f"v_add_u32 {ao[i]}, {sT[3]}, {uq}")
        a(f"s_lshl_b32 {sT[3]}, {sTile[i]}, 12")
        a(f"s_add_u32 {sT[3]}, {sT[3]}, {sT[5]}")
        a(f"v_add_u32 {to[i]}, {sT[3]}, {tq}")
        a(f"s_lshl_b32 {sT[3]}, {sTile[i]}, 9")
        a(f"v_add_u32 {uoa[i]}, {sT[3]}, {up}")
    a(f"s_lshl_b32 {sT[3]}, {sNT}, 12")
    a(f"s_add_u32 {sT[3]}, {sT[3]}, {sT[4]}")
    a(f"v_add_u32 {tq}, {sT[3]}, {l16}")
    a(f"s_lshl_b32 {sT[0]}, {sNT}, 9")
    a(f"v_lshlrev_b32 {up}, 3, {lane}")
    a(f"v_add_u32 {uq}, {sT[0]}, {up}")
    a(f"s_mul_i32 {sT[0]}, {sW}, {UTC}")
    a(f"v_add_u32 {up}, {sT[0]}, {up}")
    a(f"v_mov_b32 {mi}, {MISC}")
    a(f"v_lshlrev_b32 {ca}, 5, {lane}")
    a(f"v_add_u32 {ca}, {W_CAND}, {ca}")
    a(f"s_lshl_b32 {sT[0]}, {sSIG}, 14")
    a(f"s_lshl_b32 {sT[1]}, {sC}, 8")
    a(f"s_add_u32 {sT[0]}, {sT[0]}, {sT[1]}")
    a(f"s_add_u32 {sT[0]}, {sT[0]}, 4096")
    a(f"v_add_u32 {wda[0]}, {sT[0]}, {l4}")
    a(f"v_add_u32 {wda[1]}, 0x2000, {wda[0]}")
    a(f"v_and_b32 {t}, 7, {lane}")
    a(f"v_mul_u32_u24 {t}, 3, {t}")
    pub = G.stats("U")
    def pub2():
        pub()
        a(f"s_mov_b64 exec, {sFFN}")
        for f in range(16):
            a(f"global_load_dword {wd[f]}, {wda[f >> 3]}, {pWD} offset:{(f % 8 - 4) * 1024}")
        a(f"s_mov_b64 exec, -1")
    G.tab("U", pub2)
    G.dump_lds("tab")
    V.release("wda")
    cd = V.alloc("cd", 8)
    hq = [V.alloc(f"hq{i}", 2) for i in range(4)]
    go = [V.alloc(f"go{i}", 4) for i in range(4)]
    def ldcand():
        a(f"global_load_dwordx4 {cd[0:4]}, {ca}, {pWS} sc1")
        a(f"global_load_dwordx4 {cd[4:8]}, {ca}, {pWS} offset:16 sc1")
    def ldT(i):
        if i < 4:
            a(f"global_load_dwordx2 {hq[i]}, {tq}, {pWS} offset:{1024*i + 8} sc1")
        else:
            a(f"global_load_dwordx4 {go[i-4]}, {to[i-4]}, {pWS} sc1")
    H = hq + [g[2:4] for g in go]
    ldcand()
    for i in range(8): ldT(i)
    a(f"v_alignbit_b32 {tg[0]}, {sTAG}, {sTAG}, {t}")
    a(f"v_lshrrev_b32 {tg[1]}, 8, {tg[0]}")
    a(f"v_and_b32 {tg[0]}, {TM:#x}, {tg[0]}")
    a(f"v_and_b32 {tg[1]}, {TM:#x}, {tg[1]}")
    a(f"s_lshl_b32 {sD[0]}, {sDSK[0]}, 16")
    a(f"s_and_b32 {sD[1]}, {sDSK[0]}, 0xffff0000")
    a(f"s_lshl_b32 {sD[2]}, {sDSK[1]}, 16")
    a(f"s_and_b32 {sD[3]}, {sDSK[1]}, 0xffff0000")
    a(f"s_mov_b32 {sSPIN}, {SPIN}")
    a("s_branch L_CP_CHK")
    a.label("L_CP_RETRY")
    ldcand()
    a("s_waitcnt vmcnt(0)")
    a.label("L_CP_CHK")
    a(f"v_xor_b32 {t}, {sTAG}, {cd[1]}")
    for k in (3, 5, 7):
        a(f"v_bitop3_b32 {t}, {t}, {cd[k]}, {sTAG} bitop3:0xf6")
    a(f"v_cmp_ne_u32 vcc, 0, {t}")
    a(f"s_cbranch_vccz L_CP_OK")
    a(f"s_sub_u32 {sSPIN}, {sSPIN}, 1")
    a(f"s_cbranch_scc0 L_CP_RETRY")
    a.label("L_CP_OK")
    G.stamp(4)
    a(f"v_max3_u32 {t}, {cd[0]}, {cd[2]}, {cd[4]}")
    a(f"v_max_u32 {t}, {t}, {cd[6]}")
    G.reduce(t, "v_max_u32")
    a(f"v_readlane_b32 {sT[0]}, {t}, 63")
    a(f"s_and_b32 {sT[1]}, {sT[0]}, 0x7ff")
    a(f"s_sub_u32 {sIDX}, 0x7ff, {sT[1]}")
    a(f"s_ashr_i32 {sT[1]}, {sT[0]}, 31")
    a(f"s_not_b32 {sT[1]}, {sT[1]}")
    a(f"s_or_b32 {sT[1]}, {sT[1]}, 0x80000000")
    a(f"s_xor_b32 {sT[0]}, {sT[0]}, {sT[1]}")
    a(f"s_and_b32 {sRB}, {sT[0]}, 0xffff0000")
    xr = cd[6]; st = cd[4:6]; sta = cd[7]
    a(f"s_lshl_b32 {sT[0]}, {sIDX}, 10")
    a(f"s_lshl_b32 {sT[1]}, {sC}, 8")
    a(f"s_add_u32 {sT[0]}, {sT[0]}, {sT[1]}")
    a(f"v_add_u32 {t}, {sT[0]}, {l4}")
    a(f"s_lshr_b32 {sT[0]}, {sIDX}, 5")
    a(f"s_lshl_b32 {sT[0]}, {sT[0]}, 2")
    a(f"s_and_b32 {sT[1]}, {sIDX}, 3")
    a(f"s_add_u32 {sT[0]}, {sT[0]}, {sT[1]}")
    a(f"s_lshl_b32 {sT[0]}, {sT[0]}, 3")
    a(f"s_add_u32 {sT[0]}, {sT[0]}, {W_CST}")
    a(f"v_mov_b32 {sta}, {sT[0]}")
    a(f"s_mov_b64 exec, {sFFN}")
    a(f"global_load_dword {xr}, {t}, {pU}")
    a(f"global_load_dwordx2 {st}, {sta}, {pWS} sc1")
    a(f"s_mov_b64 exec, -1")
    tf = t
    a(f"s_mov_b32 {sSPIN}, {SPIN}")
    a.label("L_TF")
    a(f"ds_read_b32 {tf}, {mi} offset:{M_TABF}")
    a(f"v_cmp_ne_u32 vcc, 4, {tf}")
    a(f"s_cbranch_vccz L_TF_OK")
    a(f"s_sub_u32 {sSPIN}, {sSPIN}, 1")
    a(f"s_cbranch_scc0 L_TF")
    a.label("L_TF_OK")
    z = cd[0:2]; chk = cd[2]
    cq = [V.alloc(f"cq{i}", 2) for i in range(4)]
    a(f"v_mov_b32 {z[0]}, 0")
    a(f"v_mov_b32 {z[1]}, 0")
    a(f"ds_write_b64 {up}, {z}")
    a(f"s_mov_b32 {sT[2]}, 0x05040100")
    a(f"s_mov_b32 {sT[3]}, 0x07060302")
    a(f"s_mov_b32 {sT[4]}, {TM:#x}")
    a(f"s_mov_b32 {sSPIN}, {SPIN}")
    a("s_branch L_TP")
    a.label("L_TR")
    for i in range(8):
        a(f"v_bitop3_b32 {chk}, {H[i][0]}, {H[i][1]}, {sT[4]} bitop3:0xa8")
        a(f"v_cmp_ne_u32 vcc, 0, {chk}")
        a(f"s_cmp_lg_u64 vcc, 0")
        a(f"s_cselect_b64 exec, -1, 0")
        ldT(i)
        a(f"s_not_b64 exec, exec")
        a(f"v_xor_b32 {H[i][0]}, {H[i][0]}, {tg[0]}").nowait = True
        a(f"v_xor_b32 {H[i][1]}, {H[i][1]}, {tg[1]}").nowait = True
        a(f"s_mov_b64 exec, -1")
    a("s_waitcnt vmcnt(0)")
    a.label("L_TP")
    for i in range(8):
        a(f"v_xor_b32 {H[i][0]}, {H[i][0]}, {tg[0]}")
        a(f"v_xor_b32 {H[i][1]}, {H[i][1]}, {tg[1]}")
        if i == 0:
            a(f"v_or_b32 {chk}, {H[i][0]}, {H[i][1]}")
        else:
            a(f"v_or3_b32 {chk}, {chk}, {H[i][0]}, {H[i][1]}")
        if i & 1 and i < 4:
            for c in range(4):
                a(f"v_perm_b32 {cq[c][i >> 1]}, {hq[i][c >> 1]}, {hq[i-1][c >> 1]}, {sT[2 + (c & 1)]}")
        if i == 3:
            for c in range(4):
                a(f"ds_write_b64 {uq}, {cq[c]} offset:{c*UTC + 512}")
        if i >= 4:
            for c in range(4):
                op = "ds_write_b16_d16_hi" if c & 1 else "ds_write_b16"
                a(f"{op} {uoa[i-4]}, {H[i][c>>1]} offset:{c*UTC + 512}")
    a(f"v_and_b32 {chk}, {TM:#x}, {chk}")
    a(f"v_cmp_ne_u32 vcc, 0, {chk}")
    a(f"s_cbranch_vccz L_TOK")
    a(f"s_sub_u32 {sSPIN}, {sSPIN}, 1")
    a(f"s_cbranch_scc0 L_TR")
    a.label("L_TOK")
    a("s_waitcnt lgkmcnt(0)")
    G.stamp(5)
    a("s_barrier")
    G.dump_lds("ut")
    for n in ["tq", "uq", "up", "ca", "tg"] + [f"{p}{i}" for p in ("hq", "cq", "uoa", "to") for i in range(4)]:
        V.release(n)
    a(f"s_cmp_eq_u64 {sFFN}, 0")
    a(f"s_cbranch_scc1 L_NOFFN")
    ffn(G, wd, cd, t, a15, g4, mi)
    a.label("L_NOFFN")
    G.stamp(10)
    V.release("cd", "wd", "ut", "a15", "g4")
    xf = [V.alloc(f"xf{i}", 4) for i in range(4)]
    xn = [V.alloc(f"xn{i}", 4) for i in range(4)]
    inv = V.alloc("inv", 4); t2 = V.alloc("t2", 2)
    a(f"ds_read_b128 {inv}, {mi} offset:{M_INV}")
    a(f"s_or_b32 {sT[0]}, s2, {sW}")
    a(f"s_cmp_eq_u32 {sT[0]}, 0")
    a(f"s_cselect_b64 exec, 1, 0")
    a(f"s_add_u32 {sT[1]}, {sE}, 1")
    a(f"v_mov_b32 {t2[0]}, 0")
    a(f"v_mov_b32 {t2[1]}, {sT[1]}")
    a(f"global_store_dword {t2[0]}, {t2[1]}, {pWS} sc1")
    a(f"s_mov_b64 exec, -1")
    e1 = [V.alloc(f"e1{i}", 4) for i in range(4)]
    gg = [V.alloc(f"gg{i}", 4) for i in range(4)]
    p = [V.alloc(f"p{i}", 4) for i in range(2)]
    ea = V.alloc("ea"); cn = V.alloc("cn")
    sav = V.alloc("sav", 14)
    a(f"v_lshlrev_b32 {ea}, 2, {r64}")
    sOW, sOM = S(71), S(44, 2)
    a(f"s_lshr_b32 {sOW}, {sIDX}, 6")
    a(f"s_bfe_u32 {sT[0]}, {sIDX}, 0x40002")
    a(f"s_and_b32 {sT[1]}, {sIDX}, 3")
    a(f"s_lshl_b32 {sT[1]}, {sT[1]}, 4")
    a(f"s_or_b32 {sT[0]}, {sT[0]}, {sT[1]}")
    a(f"s_lshl_b64 {sOM}, 1, {sT[0]}")
    sOWN = S(46)
    a(f"s_mov_b32 {sOWN}, 0")
    for i in range(4):
        a.begin()
        for k in range(2):
            a(f"v_cvt_f32_f16 {xn[i][2*k]}, {go[i][2+k]}")
            a(f"v_cvt_f32_f16_sdwa {xn[i][2*k+1]}, {go[i][2+k]} dst_sel:DWORD dst_unused:UNUSED_PAD src0_sel:WORD_1")
            a(f"v_lshlrev_b32 {xf[i][2*k]}, 16, {go[i][k]}")
            a(f"v_and_b32 {xf[i][2*k+1]}, 0xffff0000, {go[i][k]}")
        for k in (0, 2):
            a(f"v_pk_mul_f32 {e1[i][k:k+2]}, {xn[i][k:k+2]}, {sD[k:k+2]}")
        for k in range(4):
            a(f"v_cvt_pk_bf16_f32 {e1[i][k]}, 0, {e1[i][k]}")
        silu_rb(G, gg[i], xn[i], gg[i])
        a.end()
        if i == 0:
            pass
    for i in range(4):
        pp = p[i & 1]
        a(f"s_mov_b32 {sSPIN}, {SPIN}")
        a.label(f"L_EX{i}")
        a(f"ds_read_b32 {cn}, {mi} offset:{M_EXC + 4*i}")
        a(f"v_cmp_ne_u32 vcc, 4, {cn}")
        a(f"s_cbranch_vccz L_EX{i}_OK")
        a(f"s_sub_u32 {sSPIN}, {sSPIN}, 1")
        a(f"s_cbranch_scc0 L_EX{i}")
        a.label(f"L_EX{i}_OK")
        for c in range(4):
            a(f"ds_read_b32 {pp[c]}, {ea} offset:{EX + i*4096 + c*1024}")
        a.begin()
        for k in range(4):
            a(f"v_cvt_pk_bf16_f32 {pp[k]}, 0, {pp[k]}")
        for k in (0, 2):
            a(f"v_pk_fma_f32 {pp[k:k+2]}, {pp[k:k+2]}, {inv[k:k+2]}, {e1[i][k:k+2]}")
        for k in range(4):
            a(f"v_cvt_pk_bf16_f32 {e1[i][k]}, 0, {pp[k]}")
        for k in (0, 2):
            a(f"v_pk_mul_f32 {pp[k:k+2]}, {e1[i][k:k+2]}, {gg[i][k:k+2]}")
        for k in range(4):
            a(f"v_cvt_pk_bf16_f32 {pp[k]}, 0, {pp[k]}")
        for k in (0, 2):
            a(f"v_pk_add_f32 {pp[k:k+2]}, {pp[k:k+2]}, {xf[i][k:k+2]}")
        a(f"v_cvt_pk_bf16_f32 {gg[i][0]}, {pp[0]}, {pp[1]}")
        a(f"v_cvt_pk_bf16_f32 {gg[i][1]}, {pp[2]}, {pp[3]}")
        a(f"s_lshl_b32 {sT[0]}, {sTile[i]}, 2")
        a(f"s_add_u32 {sT[0]}, {sT[0]}, {sW}")
        a(f"s_cmp_eq_u32 {sT[0]}, {sOW}")
        a(f"s_cselect_b64 {sTP[1]}, {sOM}, 0")
        a(f"s_andn2_b64 exec, -1, {sTP[1]}")
        a(f"global_store_dwordx2 {ao[i]}, {gg[i][0:2]}, {pOUT}")
        a(f"s_mov_b64 exec, -1")
        a.end()
        a(f"s_cmp_eq_u32 {sT[0]}, {sOW}")
        a(f"s_cbranch_scc0 L_NS{i}")
        a(f"s_mov_b32 {sOWN}, 1")
        for k in (0, 2):
            a(f"v_pk_mov_b32 {sav[k:k+2]}, {e1[i][k:k+2]}, {e1[i][k:k+2]} op_sel:[0,1]")
            a(f"v_pk_mov_b32 {sav[4+k:6+k]}, {xf[i][k:k+2]}, {xf[i][k:k+2]} op_sel:[0,1]")
            a(f"v_pk_mov_b32 {sav[8+k:10+k]}, {xn[i][k:k+2]}, {xn[i][k:k+2]} op_sel:[0,1]")
        a(f"v_mov_b32 {sav[12]}, {ao[i]}")
        a.label(f"L_NS{i}")
        G.stamp(6 + i)
    a(f"s_cmp_eq_u32 {sOWN}, 0")
    a(f"s_cbranch_scc1 L_FIN")
    q = [e1[0], e1[1], e1[2]]
    ga = ea
    a(f"s_mul_i32 {sT[0]}, {sG}, {W_FG}")
    a(f"s_add_u32 {sT[0]}, {sT[0]}, {W_FFN}")
    a(f"v_add_u32 {ga}, {sT[0]}, {l16}")
    a(f"v_mov_b32 {q[2][0]}, 0")
    a(f"v_mov_b32 {q[2][1]}, {sTAG}")
    a(f"v_mov_b32 {q[2][2]}, 0")
    a(f"v_mov_b32 {q[2][3]}, {sTAG}")
    a(f"s_mov_b32 {sSPIN}, {SPIN}")
    rs = gg[0]
    first = True
    a.label("L_GA")
    a(f"global_load_dwordx4 {q[0]}, {ga}, {pWS} sc1")
    a(f"global_load_dwordx4 {q[1]}, {ga}, {pWS} offset:1024 sc1")
    a(f"s_mov_b32 exec_hi, 0xfff")
    a(f"global_load_dwordx4 {q[2]}, {ga}, {pWS} offset:2048 sc1")
    a(f"s_mov_b32 exec_hi, -1")
    a(f"v_mov_b32 {rs[0]}, {sRB}")
    a(f"v_mul_f32 {rs[0]}, {LOG2E | 0x80000000:#x}, {rs[0]}")
    a(f"v_exp_f32 {rs[0]}, {rs[0]}")
    a(f"v_add_f32 {rs[0]}, 1.0, {rs[0]}")
    a(f"v_rcp_f32 {rs[0]}, {rs[0]}")
    a(f"v_cvt_pk_bf16_f32 {rs[0]}, 0, {rs[0]}")
    tags = [q[0][1], q[0][3], q[1][1], q[1][3], q[2][1], q[2][3]]
    a(f"v_xor_b32 {cn}, {sTAG}, {tags[0]}")
    for t in tags[1:]:
        a(f"v_bitop3_b32 {cn}, {cn}, {t}, {sTAG} bitop3:0xf6")
    a(f"v_cmp_ne_u32 vcc, 0, {cn}")
    a(f"s_cbranch_vccz L_GA_OK")
    a(f"s_sub_u32 {sSPIN}, {sSPIN}, 1")
    a(f"s_cbranch_scc0 L_GA")
    a.label("L_GA_OK")
    y0, y1 = q[0][0], q[0][2]
    a(f"v_add_f32 {y0}, {y0}, {q[1][0]}")
    a(f"v_add_f32 {y1}, {y1}, {q[1][2]}")
    a(f"v_add_f32 {y0}, {y0}, {q[2][0]}")
    a(f"v_add_f32 {y1}, {y1}, {q[2][2]}")
    a(f"v_permlane32_swap_b32 {y0}, {y1}")
    a(f"v_add_f32 {y0}, {y0}, {y1}")
    a(f"v_mov_b32 {y1}, {y0}")
    a(f"v_permlane16_swap_b32 {y0}, {y1}")
    a(f"v_add_f32 {y0}, {y0}, {y1}")
    for r in (2, 4, 8):
        a(f"v_add_f32_dpp {y0}, {y0}, {y0} row_ror:{r} row_mask:0xf bank_mask:0xf")
    a(f"v_cvt_pk_bf16_f32 {y0}, 0, {y0}")
    a(f"v_mul_f32 {y0}, {y0}, {rs[0]}")
    a(f"v_cvt_pk_bf16_f32 {y0}, 0, {y0}")
    for k, ln in enumerate((0, 32, 1, 33)):
        a(f"v_readlane_b32 {sT[k]}, {y0}, {ln}")
    B = gg[1]; g2 = gg[2]
    for k in (0, 2):
        a(f"v_pk_add_f32 {B[k:k+2]}, {sav[8+k:10+k]}, {sTP[k//2]}")
    for k in range(4):
        a(f"v_cvt_pk_bf16_f32 {B[k]}, 0, {B[k]}")
    silu_rb(G, g2, B, g2)
    for k in (0, 2):
        a(f"v_pk_mul_f32 {g2[k:k+2]}, {g2[k:k+2]}, {sav[k:k+2]}")
    for k in range(4):
        a(f"v_cvt_pk_bf16_f32 {g2[k]}, 0, {g2[k]}")
    for k in (0, 2):
        a(f"v_pk_add_f32 {g2[k:k+2]}, {g2[k:k+2]}, {sav[4+k:6+k]}")
    a(f"v_cvt_pk_bf16_f32 {B[0]}, {g2[0]}, {g2[1]}")
    a(f"v_cvt_pk_bf16_f32 {B[1]}, {g2[2]}, {g2[3]}")
    a(f"s_mov_b64 exec, {sOM}")
    a(f"global_store_dwordx2 {sav[12]}, {B[0:2]}, {pOUT}")


def conv(G, part, A, Zf, box, bA, wA, exA, mi):
    a, V = G.a, G.V
    tiles = OWN[part]
    snap = V.snapshot()
    acc = {T: V.alloc(f"acc{T}", 4) for T in tiles}
    NB = 8
    Bb = [V.alloc(f"B{i}", 4) for i in range(NB)]
    one = V.alloc("one")
    nR = max(tiles) - 3
    W = [V.alloc(f"W{i}", 4) for i in range(nR)]
    S9 = V.alloc("S9", 4); S7 = V.alloc("S7", 4)
    started = set()
    def mf(T, Af, Bf):
        c = acc[T] if T in started else "0"
        started.add(T)
        a(f"v_mfma_f32_16x16x32_f16 {acc[T]}, {Af}, {Bf}, {c}")
    loads = [(g, r) for g in range(max(tiles) + 1) for r in range(8)]
    def ld(i):
        g, r = loads[i]
        a(f"ds_read_b128 {Bb[i % NB]}, {bA} offset:{448 + 512*g - 64*r}")
    a(f"v_mov_b32 {one}, 1")
    for i in range(NB):
        ld(i)
    for R in range(nR):
        a(f"ds_read2_b64 {W[R]}, {wA} offset0:{64*R} offset1:{64*R+1}")
    extra = []
    for R in range(nR):
        extra.append(("box", R))
    seg3 = {T: [(R, T - R - 4) for R in range(nR) if T - R - 4 >= 0] for T in tiles}
    boxdone = set()
    def box_step(R):
        a(f"v_mfma_f32_16x16x32_f16 {S9}, {W[R]}, {box[0]}, 0")
        a(f"v_mfma_f32_16x16x32_f16 {S7}, {W[R]}, {box[1]}, 0")
    def box_cvt(R):
        for r in range(4):
            a(f"v_cvt_pk_f16_f32 {W[R][r]}, {S9[r]}, {S7[r]}")
        boxdone.add(R)
    slot = {T: i for i, T in enumerate(tiles)}
    def fin(T):
        a(f"ds_write_b128 {exA}, {acc[T]} offset:{EX + slot[T]*4096}")
        a(f"s_mov_b64 exec, 1")
        a(f"ds_add_u32 {mi}, {one} offset:{M_EXC + 4*slot[T]}")
        a(f"s_mov_b64 exec, -1")
    pend_fin = []
    for i, (g, r) in enumerate(loads):
        Bf = Bb[i % NB]
        for T in tiles:
            b = T - g
            if 0 <= b <= 3:
                mf(T, A[8*b + r], Bf)
            if b == 4 and r == 0:
                mf(T, A[32], Bf)
        if i + NB < len(loads):
            ld(i + NB)
        if r == 1 and 1 <= g <= nR:
            box_step(g - 1)
        if r == 4 and 1 <= g <= nR:
            box_cvt(g - 1)
        if r == 6:
            for T in tiles:
                for (R, d) in list(seg3[T]):
                    if R in boxdone:
                        mf(T, W[R], Zf[d]); seg3[T].remove((R, d))
        if r == 2 and pend_fin:
            for T in pend_fin: fin(T)
            pend_fin = []
        if r == 7 and g in tiles:
            assert not seg3[g], (part, g, seg3)
            pend_fin.append(g)
    for T in pend_fin: fin(T)
    V.restore(snap)


def krole(G):
    a, V = G.a, G.V
    lane, l4, l16 = G.lane, G.l4, G.l16
    ga = V.alloc("ga"); t = V.alloc("kt"); t2 = V.alloc("kt2")
    sGU = S(70)
    a(f"v_lshrrev_b32 {ga}, 1, {lane}")
    a(f"s_lshl_b32 {sT[0]}, {sC}, 7")
    a(f"v_add_u32 {ga}, {sT[0]}, {ga}")
    a(f"v_mul_u32_u24 {ga}, 2752, {ga}")
    a(f"v_and_b32 {t}, 16, {l16}")
    a(f"s_lshl_b32 {sT[0]}, {sSIG}, 5")
    a(f"v_add3_u32 {ga}, {ga}, {t}, {sT[0]}")
    a(f"s_lshl_b32 {sGU}, {sC}, 13")
    a(f"s_add_u32 {sGU}, {sGU}, {GU}")
    def dma(ptr, off, sgn):
        a(f"s_mov_b64 exec, {sFFN}")
        for i in range(4):
            ii = i if sgn > 0 else 3 - i
            a(f"s_add_u32 m0, {sGU}, {off + 1024*ii}")
            a(f"global_load_lds_dwordx4 {ga}, {ptr}")
            if i < 3: a(f"v_add_u32 {ga}, {sgn*32*2752}, {ga}")
        a(f"s_mov_b64 exec, -1")
    dma(pWG, 0, 1)
    G.stage_addrs()
    a15 = V.alloc("a15"); g4 = V.alloc("g4")
    tA = V.alloc("tA"); p0 = V.alloc("p0"); p2 = V.alloc("p2"); zw = V.alloc("zw"); tl = V.alloc("tl"); tsel = V.alloc("tsel")
    fA = [V.alloc(f"fA{i}") for i in range(5)]
    zA = V.alloc("zA"); bA = V.alloc("bA"); wA = V.alloc("wA"); exA = V.alloc("exA"); mi = V.alloc("kmi")
    box = [V.alloc("box9", 4), V.alloc("box7", 4)]
    sh = V.alloc("sh", 2)
    a(f"v_and_b32 {a15}, 15, {lane}")
    a(f"v_lshrrev_b32 {g4}, 4, {lane}")
    a(f"s_lshr_b32 {sT[0]}, {sC}, 1")
    a(f"s_mul_i32 {sT[0]}, {sT[0]}, {TABP}")
    a(f"s_and_b32 {sT[1]}, {sC}, 1")
    a(f"s_lshl_b32 {sT[1]}, {sT[1]}, 9")
    a(f"s_add_u32 {sT[0]}, {sT[0]}, {sT[1]}")
    a(f"v_and_b32 {t}, 31, {lane}")
    a(f"v_lshrrev_b32 {t2}, 5, {lane}")
    a(f"v_mul_u32_u24 {tA}, {ROWS}, {t}")
    a(f"v_lshl_add_u32 {tA}, {t2}, 4, {tA}")
    a(f"v_add_u32 {tA}, {sT[0]}, {tA}")
    sPZ = sT[2]
    a(f"s_mul_i32 {sPZ}, {sC}, {PZC}")
    a(f"s_add_u32 {sPZ}, {sPZ}, {PZ}")
    a(f"v_lshlrev_b32 {p0}, 5, {t}")
    a(f"v_lshl_add_u32 {p0}, {t2}, 4, {p0}")
    a(f"v_add_u32 {p0}, {sPZ}, {p0}")
    a(f"v_lshlrev_b32 {p2}, 5, {lane}")
    a(f"v_add_u32 {p2}, {sPZ}, {p2}")
    a(f"v_lshlrev_b32 {zw}, 1, {t}")
    a(f"v_lshl_add_u32 {zw}, {t2}, 8, {zw}")
    a(f"v_add_u32 {zw}, {sPZ}, {zw}")
    a(f"v_add_u32 {tl}, {sPZ}, {l4}")
    a(f"v_lshlrev_b32 {t}, 3, {g4}")
    a(f"v_sub_u32 {t}, {a15}, {t}")
    a(f"s_add_u32 {sT[3]}, {sPZ}, 96")
    a(f"v_lshl_add_u32 {fA[0]}, {t}, 2, {sT[3]}")
    for i in range(1, 5):
        a(f"v_add_u32 {fA[i]}, {1024*i}, {fA[0]}")
    a(f"v_sub_u32 {t2}, 15, {t}")
    for bx, lo in ((box[0], 0x1ff << 23), (box[1], 0x7f << 16)):
        a(f"s_mov_b32 {sT[4]}, {lo:#x}")
        a(f"s_mov_b32 {sT[5]}, 0")
        a(f"v_lshrrev_b64 {sh}, {t2}, {sTP[2]}")
        a(f"v_lshl_or_b32 {sh[1]}, {sh[0]}, 15, 0")
        a(f"v_and_b32 {sh[0]}, 0xff, {sh[0]}")
        a(f"v_lshl_or_b32 {sh[0]}, {sh[0]}, 15, {sh[0]}")
        for i in range(4):
            a(f"v_lshrrev_b32 {bx[i]}, {2*i}, {sh[0]}")
            a(f"v_and_b32 {bx[i]}, 0x10001, {bx[i]}")
            a(f"v_mul_u32_u24 {bx[i]}, 0x3c00, {bx[i]}")
    a(f"v_lshlrev_b32 {t}, 2, {g4}")
    a(f"v_sub_u32 {t}, {a15}, {t}")
    a(f"s_add_u32 {sT[3]}, {sPZ}, {ZOFF + 48}")
    a(f"v_lshl_add_u32 {zA}, {t}, 2, {sT[3]}")
    a(f"s_mul_i32 {sT[3]}, {sC}, {UTC}")
    a(f"v_lshlrev_b32 {t}, 4, {g4}")
    a(f"v_add_u32 {t}, {sT[3]}, {t}")
    a(f"v_lshl_add_u32 {bA}, {a15}, 5, {t}")
    a(f"v_add_u32 {bA}, 32, {bA}")
    a(f"v_xor_b32 {wA}, 3, {a15}")
    a(f"v_lshl_add_u32 {wA}, {wA}, 5, {t}")
    a(f"v_add_u32 {wA}, 456, {wA}")
    a(f"s_lshl_b32 {sT[3]}, {sC}, 10")
    a(f"v_lshlrev_b32 {t}, 4, {g4}")
    a(f"v_lshl_add_u32 {exA}, {a15}, 6, {t}")
    a(f"v_add_u32 {exA}, {sT[3]}, {exA}")
    a(f"v_mov_b32 {mi}, {MISC}")
    a(f"v_mov_b32 {tsel}, 0x0c0c0c0c")
    for n, val in ((13, 0x03020c0c), (12, 0x03020302), (6, 0x01000302), (5, 0x01000100)):
        a(f"s_mov_b64 exec, {(1 << n) - 1:#x}")
        a(f"v_mov_b32 {tsel}, {val:#x}")
    a(f"s_mov_b64 exec, -1")
    V.release("sh")
    pub = G.stats("K")
    def pub2():
        pub()
        dma(pWU, 4096, -1)
        V.release("ga")
    G.tab("K", pub2)
    G.dump_lds("tab")
    Aall = V.alloc("A", 132)
    A = [Aall[4*s:4*s+4] for s in range(33)]
    D = V.alloc("D", 16)
    for st in range(16):
        a(f"ds_read_b128 {A[2*st]}, {tA} offset:{32*ROWS + 32*st}")
        a(f"ds_read_b128 {A[2*st+1]}, {tA} offset:{32*st}")
    a(f"v_mov_b32 {t}, 1")
    a(f"s_mov_b64 exec, 1")
    a(f"ds_add_u32 {mi}, {t} offset:{M_TABF}")
    a(f"s_mov_b64 exec, -1")
    a(f"v_mov_b32 {t}, 0")
    a(f"s_mov_b64 exec, 0xffff")
    a(f"ds_write_b32 {tl}, {t}")
    a(f"s_mov_b64 exec, -1")
    for st in range(16):
        a(f"v_mfma_f32_32x32x16_f16 {D}, {A[2*st]}, {A[2*st+1]}, {D if st else 0}")
    G.stamp(4)
    w = V.alloc("pw", 20)
    nx = V.alloc("nx")
    a.begin()
    a(f"v_cvt_pk_f16_f32 {w[0]}, {D[4]}, {D[4]}")
    a(f"v_cvt_pk_f16_f32 {w[1]}, {D[4]}, {D[4]}")
    a(f"v_cvt_pk_f16_f32 {w[2]}, {D[5]}, {D[4]}")
    a(f"v_cvt_pk_f16_f32 {w[3]}, {D[5]}, {D[5]}")
    a(f"ds_write_b128 {p0}, {w[0:4]} offset:{64 + 1024}")
    a(f"ds_write_b16 {p0}, {w[0]} offset:{64 + 1024 - 4}")
    a(f"v_cvt_pk_f16_f32 {w[4]}, {D[0]}, 0")
    a(f"v_cvt_pk_f16_f32 {w[5]}, {D[1]}, {D[0]}")
    a(f"v_cvt_pk_f16_f32 {w[6]}, {D[2]}, {D[1]}")
    a(f"v_cvt_pk_f16_f32 {w[7]}, {D[3]}, {D[2]}")
    a(f"ds_write_b128 {p0}, {w[4:8]} offset:64")
    a(f"ds_write_b16 {p0}, {w[7]} offset:{64 + 16 + 2}")
    a(f"v_mov_b32_dpp {nx}, {D[8]} wave_rol:1 row_mask:0xf bank_mask:0xf")
    a(f"v_mov_b32_dpp {nx}, {D[6]} wave_shl:1 row_mask:0xf bank_mask:0xf")
    a(f"v_cvt_pk_f16_f32 {w[8]}, {D[6]}, {D[6]}")
    a(f"v_cvt_pk_f16_f32 {w[9]}, {D[6]}, {D[6]}")
    a(f"v_cvt_pk_f16_f32 {w[10]}, {D[6]}, {D[6]}")
    a(f"v_cvt_pk_f16_f32 {w[11]}, {D[7]}, {D[6]}")
    a(f"v_cvt_pk_f16_f32 {w[12]}, {D[7]}, {D[7]}")
    a(f"v_cvt_pk_f16_f32 {w[13]}, {D[7]}, {D[7]}")
    a(f"v_cvt_pk_f16_f32 {w[14]}, {nx}, {D[7]}")
    a(f"v_cvt_pk_f16_f32 {w[15]}, {nx}, {nx}")
    a(f"ds_write_b128 {p2}, {w[8:12]} offset:{64 + 2048}")
    a(f"ds_write_b128 {p2}, {w[12:16]} offset:{64 + 2048 + 16}")
    a(f"ds_write_b16 {p2}, {w[8]} offset:{64 + 2048 - 4}")
    a(f"v_cvt_pk_f16_f32 {w[16]}, {D[8]}, {D[9]}")
    a(f"v_cvt_pk_f16_f32 {w[17]}, {D[10]}, {D[11]}")
    a(f"v_readlane_b32 {sT[0]}, {w[16]}, 0")
    a(f"v_readlane_b32 {sT[1]}, {w[16]}, 1")
    a(f"s_pack_ll_b32_b16 {sT[0]}, {sT[0]}, {sT[1]}")
    a(f"v_perm_b32 {w[18]}, {sT[0]}, {sT[0]}, {tsel}")
    a(f"ds_write_b32 {tl}, {w[18]} offset:{4*1040}")
    a(f"s_mov_b64 exec, -4")
    a(f"ds_write_b16 {zw}, {w[16]} offset:{ZOFF + 56}")
    a(f"s_mov_b64 exec, 0xffffffff")
    a(f"ds_write_b16_d16_hi {zw}, {w[16]} offset:{ZOFF + 56 + 64}")
    a(f"ds_write_b16 {zw}, {w[17]} offset:{ZOFF + 56 + 128}")
    a(f"ds_write_b16_d16_hi {zw}, {w[17]} offset:{ZOFF + 56 + 192}")
    a(f"s_mov_b64 exec, -1")
    a.end()
    V.release("pw", "nx", "D", "p0", "p2", "zw", "tl", "tsel", "tA")
    for s in range(33):
        o = 32 * (s & 7)
        a(f"ds_read2_b32 {A[s][0:2]}, {fA[s >> 3]} offset0:{o+8} offset1:{o+6}")
        a(f"ds_read2_b32 {A[s][2:4]}, {fA[s >> 3]} offset0:{o+4} offset1:{o+2}")
    G.stamp(5)
    for n in [f"fA{i}" for i in range(5)]:
        V.release(n)
    Zf = [V.alloc(f"Zf{i}", 4) for i in range(4)]
    for d in range(4):
        a(f"ds_read2_b32 {Zf[d][0:2]}, {zA} offset0:{16*d} offset1:{16*d+1}")
        a(f"ds_read2_b32 {Zf[d][2:4]}, {zA} offset0:{16*d+2} offset1:{16*d+3}")
    a("s_waitcnt vmcnt(0) lgkmcnt(0)")
    G.stamp(7)
    a("s_barrier")
    G.dump_lds("ut")
    V.release("zA")
    a(f"s_cmp_eq_u32 {sPART}, 0")
    a(f"s_cbranch_scc0 L_CONV1")
    conv(G, 0, A, Zf, box, bA, wA, exA, mi)
    G.stamp(8)
    a("s_branch L_FIN")
    a.label("L_CONV1")
    conv(G, 1, A, Zf, box, bA, wA, exA, mi)
    G.stamp(8)


def ffn(G, wd, cd, t, a15, g4, mi):
    a, V = G.a, G.V
    lane, l4, l16 = G.lane, G.l4, G.l16
    snap = V.snapshot()
    xs = cd[2:4]; st = cd[4:6]; xr = cd[6]; t2 = cd[7]
    a(f"s_lshl_b32 {sT[1]}, {sC}, 8")
    ta = V.alloc("ta"); Bg = V.alloc("Bg", 32); xa = V.alloc("xa"); xw = V.alloc("xw")
    a(f"v_lshrrev_b32 {ta}, 2, {a15}")
    a(f"v_lshl_add_u32 {ta}, {g4}, 3, {ta}")
    a(f"v_lshlrev_b32 {ta}, 5, {ta}")
    a(f"v_and_b32 {xa}, 3, {lane}")
    a(f"v_lshl_add_u32 {ta}, {xa}, 3, {ta}")
    a(f"s_lshl_b32 {sT[0]}, {sC}, 13")
    a(f"s_add_u32 {sT[0]}, {sT[0]}, {GU}")
    a(f"v_add_u32 {ta}, {sT[0]}, {ta}")
    for m in range(2):
        for s in range(4):
            for hh in range(2):
                r = Bg[16*m + 4*s + 2*hh: 16*m + 4*s + 2*hh + 2]
                a(f"ds_read_b64_tr_b16 {r}, {ta} offset:{4096*m + 1024*s + 128*hh}")
    a(f"s_add_u32 {sT[1]}, {sT[1]}, {MISC + M_XS}")
    a(f"v_add_u32 {xw}, {sT[1]}, {l4}")
    a(f"v_lshlrev_b32 {xa}, 4, {g4}")
    a(f"v_add_u32 {xa}, {sT[1]}, {xa}")
    wp = V.alloc("wp", 16)
    a(f"s_mov_b32 {sT[2]}, 0x05040100")
    a(f"s_mov_b32 {sT[3]}, 0x07060302")
    for i in range(8):
        a(f"v_perm_b32 {wp[i]}, {wd[2*i+1]}, {wd[2*i]}, {sT[2]}")
        a(f"v_perm_b32 {wp[8+i]}, {wd[2*i+1]}, {wd[2*i]}, {sT[3]}")
    fa = V.alloc("fa"); pa = V.alloc("pa")
    a(f"v_lshlrev_b32 {fa}, 4, {a15}")
    a(f"v_add_u32 {fa}, {MISC + M_FP}, {fa}")
    a(f"s_lshl_b32 {sT[2]}, {sC}, 2")
    a(f"v_add_u32 {pa}, {sT[2]}, {fa}")
    oa = V.alloc("oa")
    a(f"v_lshrrev_b32 {oa}, 1, {lane}")
    a(f"s_lshl_b32 {sT[2]}, {sC}, 5")
    a(f"v_add_u32 {oa}, {sT[2]}, {oa}")
    a(f"v_mul_u32_u24 {oa}, {W_FG}, {oa}")
    a(f"v_and_b32 {t}, 16, {l16}")
    a(f"s_lshl_b32 {sT[2]}, {sSIG}, 5")
    a(f"s_add_u32 {sT[2]}, {sT[2]}, {W_FFN}")
    a(f"v_add3_u32 {oa}, {oa}, {t}, {sT[2]}")
    a(f"s_mov_b32 {sSPIN}, {SPIN}")
    a("s_branch L_FS_CHK")
    a.label("L_FS_RETRY")
    a(f"global_load_dwordx2 {st}, {t2}, {pWS} sc1")
    a.label("L_FS_CHK")
    a(f"v_cmp_ne_u32 vcc, {sTAG}, {st[1]}")
    a(f"s_cbranch_vccz L_FS_OK")
    a(f"s_sub_u32 {sSPIN}, {sSPIN}, 1")
    a(f"s_cbranch_scc0 L_FS_RETRY")
    a.label("L_FS_OK")
    a(f"v_and_b32 {st[1]}, 0xffff0000, {st[0]}")
    a(f"v_lshlrev_b32 {st[0]}, 16, {st[0]}")
    a(f"v_rcp_f32 {st[1]}, {st[1]}")
    a(f"v_lshlrev_b32 {xs[0]}, 16, {xr}")
    a(f"v_and_b32 {xs[1]}, 0xffff0000, {xr}")
    a(f"v_pk_add_f32 {xs}, {xs}, {st} op_sel_hi:[1,0]")
    a(f"v_cvt_pk_bf16_f32 {xs[0]}, 0, {xs[0]}")
    a(f"v_cvt_pk_bf16_f32 {xs[1]}, 0, {xs[1]}")
    a(f"v_pk_mul_f32 {xs}, {xs}, {st} op_sel:[0,1] op_sel_hi:[1,1]")
    a(f"v_cvt_pk_bf16_f32 {xr}, {xs[0]}, {xs[1]}")
    a(f"ds_write_b32 {xw}, {xr}")
    Ax = wd; dg = V.alloc("dg", 4); du = V.alloc("du", 4)
    for s in range(4):
        a(f"ds_read_b128 {Ax[4*s:4*s+4]}, {xa} offset:{64*s}")
    for s in range(4):
        a(f"v_mfma_f32_16x16x32_bf16 {dg}, {Ax[4*s:4*s+4]}, {Bg[4*s:4*s+4]}, {dg if s else 0}")
        a(f"v_mfma_f32_16x16x32_bf16 {du}, {Ax[4*s:4*s+4]}, {Bg[16+4*s:20+4*s]}, {du if s else 0}")
    a(f"v_mov_b32 {t}, 1")
    a(f"s_mov_b64 exec, 0xffff")
    a(f"ds_write_b32 {pa}, {dg[0]}")
    a(f"ds_write_b32 {pa}, {du[0]} offset:256")
    a(f"s_mov_b64 exec, 1")
    a(f"ds_add_u32 {mi}, {t} offset:{M_FCNT}")
    a(f"s_mov_b64 exec, -1")
    a(f"s_mov_b32 {sSPIN}, {SPIN}")
    a.label("L_FC")
    a(f"ds_read_b32 {t}, {mi} offset:{M_FCNT}")
    a(f"ds_read_b128 {dg}, {fa}")
    a(f"ds_read_b128 {du}, {fa} offset:256")
    a(f"v_cmp_ne_u32 vcc, 4, {t}")
    a(f"s_cbranch_vccz L_FC_OK")
    a(f"s_sub_u32 {sSPIN}, {sSPIN}, 1")
    a(f"s_cbranch_scc0 L_FC")
    a.label("L_FC_OK")
    a(f"v_pk_add_f32 {dg[0:2]}, {dg[0:2]}, {dg[2:4]}")
    a(f"v_pk_add_f32 {du[0:2]}, {du[0:2]}, {du[2:4]}")
    a(f"v_add_f32 {dg[0]}, {dg[0]}, {dg[1]}")
    a(f"v_add_f32 {du[0]}, {du[0]}, {du[1]}")
    a(f"v_cvt_pk_bf16_f32 {dg[0]}, 0, {dg[0]}")
    a(f"v_cvt_pk_bf16_f32 {du[0]}, 0, {du[0]}")
    a(f"v_mul_f32 {dg[1]}, {LOG2E | 0x80000000:#x}, {dg[0]}")
    a(f"v_exp_f32 {dg[1]}, {dg[1]}")
    a(f"v_add_f32 {dg[1]}, 1.0, {dg[1]}")
    a(f"v_rcp_f32 {dg[1]}, {dg[1]}")
    a(f"v_mul_f32 {dg[0]}, {dg[0]}, {dg[1]}")
    a(f"v_cvt_pk_bf16_f32 {dg[0]}, 0, {dg[0]}")
    a(f"v_mul_f32 {dg[0]}, {dg[0]}, {du[0]}")
    a(f"v_mov_b32_dpp {dg[1]}, {dg[0]} quad_perm:[1,0,3,2] row_mask:0xf bank_mask:0xf")
    a(f"v_cvt_pk_bf16_f32 {dg[0]}, {dg[0]}, {dg[1]}")
    for i in range(8):
        a(f"v_readlane_b32 {sT[i]}, {dg[0]}, {2*i}")
    y = Ax[0:4]
    a(f"v_mov_b32 {y[1]}, {sTAG}")
    a(f"v_mov_b32 {y[3]}, {sTAG}")
    for i in range(8):
        a(f"v_dot2_f32_bf16 {y[0]}, {wp[i]}, {sT[i]}, {y[0] if i else 0}")
        a(f"v_dot2_f32_bf16 {y[2]}, {wp[8+i]}, {sT[i]}, {y[2] if i else 0}")
    a(f"global_store_dwordx4 {oa}, {y}, {pWS} sc1")
    V.restore(snap)
```

```python
import sys, os
sys.path.insert(0, os.path.dirname(__file__))
from asmlib import Asm, Regs, Reg

NAME = "recurrent_scan__ssm_conv_s4d__moe_arch_mod__prompt"
REF = f"cdna_kernels/{NAME}.s.ref"

TABP, ROWS = 55120, 1040
UTC = 4608
EX = 18432
PZ, PZC, ZOFF = 110240, 4672, 4288
GU = 128928
MISC = 161696
M_KEY, M_CNT, M_TABF, M_EXC, M_FCNT, M_INV = 0, 8, 12, 16, 40, 48
M_FP = 64
M_XS = 576
LDS = 163840
assert MISC + M_XS + 1024 <= LDS
W_CST, W_CAND, W_FFN, W_FG = 16384, 20480, 24576, 3072
W_T = 4 << 20
STG = PZ
TM = 0x00070007
W_DUMP = 128 << 20
W_TS = 64 << 20
SPIN = 1 << 16
LOG2E = 0x3fb8aa3b
INV2PI = 0x3e22f983

S = lambda a, n=1: Reg("s", a, n)
pU, pLA, pAI, pCR, pCI, pLDT, pDSK = S(4, 2), S(6, 2), S(8, 2), S(10, 2), S(12, 2), S(14, 2), S(16, 2)
pWR, pWG, pWU, pWD, pOUT, pDBG, pWS = S(20, 2), S(22, 2), S(24, 2), S(26, 2), S(28, 2), S(30, 2), S(32, 2)
sLDT, sDSK = S(34, 2), S(36, 2)
sE, sTAG, sW, sC, sG, sPART, sJ = S(38), S(39), S(40), S(41), S(42), S(43), S(44)
sSEL, sROWK, sSIG, sFFN = S(45), S(46), S(47), S(48, 2)
sT = [S(50 + i) for i in range(10)]
sTP = [S(50 + 2 * i, 2) for i in range(5)]
sIDX, sRB, sSPIN = S(60), S(61), S(62)
sD = S(64, 4)
sDT = S(68, 2)
sTS = S(72, 24)
sX = [S(96 + i) for i in range(4)]

OWN = {0: [0, 3, 4, 7], 1: [1, 2, 5, 6]}


class Gen:
    def __init__(self, dump=None, ts=False, opts=None):
        self.a = Asm()
        self.dump = dump
        self.ts = ts
        self.o = opts or {}
        self.V = Regs("v", 1, 256)
        self.nts = 0

    def stamp(self, i):
        if self.ts:
            self.a(f"{'s_memtime' if self.o.get('cyc') else 's_memrealtime'} {sTS[2*i:2*i+2]}")

    def reduce(self, v, op="v_add_f32"):
        a = self.a
        for m in ("row_shr:1 row_mask:0xf", "row_shr:2 row_mask:0xf", "row_shr:4 row_mask:0xf", "row_shr:8 row_mask:0xf",
                  "row_bcast:15 row_mask:0xa", "row_bcast:31 row_mask:0xc"):
            a(f"{op}_dpp {v}, {v}, {v} {m} bank_mask:0xf")

    def cmul(self, r, x, y):
        a = self.a
        a(f"v_pk_mul_f32 {r}, {x}, {y} op_sel_hi:[1,0]")
        a(f"v_pk_fma_f32 {r}, {x}, {y}, {r} op_sel:[1,1,0] op_sel_hi:[0,1,1] neg_lo:[1,0,0]")

    def spin_begin(self, name):
        a = self.a
        a(f"s_mov_b32 {sSPIN}, {SPIN}")
        a.label(name)

    def spin_end(self, name):
        a = self.a
        done = name + "_d"
        a(f"s_cbranch_scc1 {done}")
        a(f"s_sub_u32 {sSPIN}, {sSPIN}, 1")
        a(f"s_cbranch_scc0 {name}")
        a.label(done)

    def prologue(self):
        a, V = self.a, self.V
        self.stamp(0)
        a("s_cmp_ge_u32 s2, 0x100")
        a("s_cbranch_scc1 L_EXIT")
        a("s_load_dwordx16 s[4:19], s[0:1], 0")
        a("s_load_dwordx2 s[32:33], s[0:1], 112")
        a("s_load_dwordx8 s[20:27], s[0:1], 64")
        a("s_load_dwordx4 s[28:31], s[0:1], 96")
        self.lane = lane = V.alloc("lane")
        self.l4 = l4 = V.alloc("l4")
        self.l16 = l16 = V.alloc("l16")
        t0 = V.alloc("t0"); t1 = V.alloc("t1")
        self.x = x = V.alloc("x", 4); self.wr = wr = V.alloc("wr", 4); self.par = par = V.alloc("par", 4)
        self.prefetch_code()
        a(f"v_lshrrev_b32 {t0}, 6, v0")
        a(f"v_and_b32 {lane}, 63, v0")
        a(f"v_readfirstlane_b32 {sW}, {t0}")
        a(f"s_lshr_b32 {sJ}, s2, 3")
        a(f"s_and_b32 {sG}, s2, 7")
        a(f"s_lshl_b32 {sG}, {sG}, 4")
        a(f"s_lshr_b32 {sT[0]}, {sJ}, 1")
        a(f"s_add_u32 {sG}, {sG}, {sT[0]}")
        a(f"s_and_b32 {sPART}, {sJ}, 1")
        a(f"s_lshr_b32 {sT[1]}, s2, 2")
        a(f"s_lshl_b32 {sT[1]}, {sT[1]}, 3")
        a(f"s_add_u32 {sT[1]}, {sT[1]}, {sW}")
        a(f"s_lshl_b32 {sT[1]}, {sT[1]}, 2")
        a(f"s_and_b32 {sT[4]}, s2, 3")
        a(f"s_add_u32 {sT[1]}, {sT[1]}, {sT[4]}")
        a(f"s_sub_u32 {sROWK}, 0x7ff, {sT[1]}")
        a(f"s_lshl_b32 {sT[1]}, {sT[1]}, 10")
        a(f"v_lshlrev_b32 {l16}, 4, {lane}")
        a(f"v_add_u32 {t0}, {sT[1]}, {l16}")
        a(f"v_lshlrev_b32 {l4}, 2, {lane}")
        a(f"s_and_b32 {sC}, {sW}, 3")
        a(f"s_lshl_b32 {sT[2]}, {sG}, 2")
        a(f"s_add_u32 {sT[2]}, {sT[2]}, {sC}")
        a(f"s_lshl_b32 {sT[2]}, {sT[2]}, 8")
        a(f"v_add_u32 {t1}, {sT[2]}, {l4}")
        a(f"s_lshl_b32 {sT[3]}, {sG}, 3")
        a("s_waitcnt lgkmcnt(0)")
        a(f"global_load_dwordx4 {x}, {t0}, {pU}")
        a(f"s_load_dword {sE}, {pWS}, 0")
        a(f"s_load_dwordx2 {sLDT}, {pLDT}, {sT[3]}")
        a(f"s_load_dwordx2 {sDSK}, {pDSK}, {sT[3]}")
        a(f"global_load_dwordx4 {wr}, {l16}, {pWR}")
        for i, p in enumerate((pLA, pAI, pCR, pCI)):
            a(f"global_load_dword {par[i]}, {t1}, {p}")
        if self.o.get("ts9"): self.stamp(9)
        a(f"s_lshr_b32 {sT[0]}, {sJ}, 1")
        a(f"s_lshr_b32 {sT[1]}, {sT[0]}, 2")
        a(f"s_lshl_b32 {sT[1]}, {sT[1]}, 3")
        a(f"s_and_b32 {sT[2]}, s2, 7")
        a(f"s_add_u32 {sT[1]}, {sT[1]}, {sT[2]}")
        a(f"s_lshl_b32 {sT[1]}, {sT[1]}, 2")
        a(f"s_and_b32 {sT[0]}, {sT[0]}, 3")
        a(f"s_add_u32 {sSIG}, {sT[1]}, {sT[0]}")
        a(f"s_cmp_eq_u32 {sPART}, 1")
        a(f"s_cselect_b32 {sSIG}, {sSIG}, 127")
        a(f"s_cmp_lt_u32 {sSIG}, 86")
        a(f"s_cselect_b64 {sFFN}, -1, 0")
        a(f"s_cselect_b32 {sSIG}, {sSIG}, 0")
        V.release("t0", "t1")
        a(f"s_cmp_lt_u32 {sW}, 4")
        a("s_cbranch_scc0 L_KROLE")

    def stage_addrs(self):
        a, V = self.a, self.V
        lane = self.lane
        t0 = V.alloc("t0"); t1 = V.alloc("t1")
        self.sw = sw = V.alloc("sw"); self.sr = sr = V.alloc("sr"); self.ta = ta = V.alloc("ta0"); self.tb = tb = V.alloc("tb0")
        a(f"v_bfe_u32 {t0}, {lane}, 1, 3")
        a(f"v_xor_b32 {t0}, {sW}, {t0}")
        a(f"v_lshlrev_b32 {sw}, 7, {lane}")
        a(f"v_lshl_add_u32 {sw}, {t0}, 4, {sw}")
        a(f"v_and_b32 {t0}, 7, {lane}")
        a(f"v_lshrrev_b32 {t1}, 3, v0")
        a(f"v_lshlrev_b32 {ta}, 16, {t1}")
        a(f"v_lshl_add_u32 {ta}, {t0}, 4, {ta}")
        a(f"s_lshr_b32 {sT[0]}, s2, 5")
        a(f"s_lshl_b32 {sT[0]}, {sT[0]}, 12")
        a(f"s_and_b32 {sT[1]}, s2, 3")
        a(f"s_lshl_b32 {sT[1]}, {sT[1]}, 10")
        a(f"s_add_u32 {sT[0]}, {sT[0]}, {sT[1]}")
        a(f"s_and_b32 {sT[1]}, s2, 28")
        a(f"s_lshl_b32 {sT[1]}, {sT[1]}, 5")
        a(f"s_add_u32 {sT[0]}, {sT[0]}, {sT[1]}")
        a(f"s_add_u32 {sT[0]}, {sT[0]}, {W_T}")
        a(f"v_add_u32 {ta}, {sT[0]}, {ta}")
        a(f"v_add_u32 {tb}, 0x8000, {ta}")
        a(f"v_lshlrev_b32 {sr}, 7, {t1}")
        a(f"v_bfe_u32 {t1}, {t1}, 1, 3")
        a(f"v_xor_b32 {t1}, {t1}, {t0}")
        a(f"v_lshl_add_u32 {sr}, {t1}, 4, {sr}")
        self.sw2 = sw2 = V.alloc("sw2")
        a(f"v_add_u32 {sw2}, {STG + 8}, {sw}")
        a(f"v_add_u32 {sw}, {STG}, {sw}")
        a(f"v_add_u32 {sr}, {STG}, {sr}")
        V.release("t0", "t1")

    def prefetch_code(self):
        a, V = self.a, self.V
        t = V.alloc("pf")
        a(f"s_getpc_b64 {sTP[0]}")
        a.label(lab := a.newlabel("L_PC"))
        a(f"s_sub_u32 {sTP[0][0]}, {sTP[0][0]}, {lab}-L_BEGIN")
        a(f"s_subb_u32 {sTP[0][1]}, {sTP[0][1]}, 0")
        a(f"v_lshlrev_b32 {t}, 6, v0")
        a(f"v_min_u32 {t}, L_END-L_BEGIN-4, {t}")
        a(f"global_load_dword {t}, {t}, {sTP[0]}")

    def stats(self, role):
        a, V = self.a, self.V
        x, wr = self.x, self.wr
        acc = V.alloc("acc"); xf = V.alloc("xf", 8); mean = V.alloc("mean"); negm = V.alloc("negm")
        s2 = V.alloc("s2", 2); pk = V.alloc("pk", 4); ad = V.alloc("ad"); t = V.alloc("st"); wf = V.alloc("wf", 8)
        msk = V.alloc("msk"); kk = V.alloc("kk", 2); mi = V.alloc("smi")
        one = sT[0]
        sT0, sT1 = sX[2], sX[3]
        a(f"s_mul_i32 {sTAG}, {sE}, 0x9E3779B1")
        a(f"s_add_u32 {sTAG}, {sTAG}, 0x7F4A7C15")
        a(f"s_mov_b32 {sT[2]}, {sTAG}")
        a(f"s_mov_b32 {sT[3]}, {sTAG}")
        a(f"s_mul_i32 {sT[1]}, {sW}, 3")
        a(f"s_lshr_b64 {sTP[1]}, {sTP[1]}, {sT[1]}")
        a(f"s_and_b32 {sT0}, {sT[2]}, {TM:#x}")
        a(f"s_lshr_b32 {sT[2]}, {sT[2]}, 8")
        a(f"s_and_b32 {sT1}, {sT[2]}, {TM:#x}")
        a(f"s_mov_b32 {one}, 0x3f803f80")
        a(f"v_mov_b32 {msk}, {TM ^ 0xffffffff:#x}")
        a(f"v_mov_b32 {pk[1]}, {sTAG}")
        a(f"v_mov_b32 {pk[3]}, {sTAG}")
        a(f"v_mov_b32 {mi}, {MISC}")
        a(f"s_lshl_b32 {sT[1]}, s2, 3")
        a(f"s_add_u32 {sT[1]}, {sT[1]}, {W_CAND}")
        a(f"v_mov_b32 {ad}, {sT[1]}")
        G0 = V.alloc("G0", 4); G1 = V.alloc("G1", 4)
        a.begin()
        a(f"ds_write2st64_b64 {self.sw}, {x[0:2]}, {x[2:4]} offset1:16")
        a(f"v_dot2_f32_bf16 {acc}, {x[0]}, {one}, 0")
        for i in range(1, 4):
            a(f"v_dot2_f32_bf16 {acc}, {x[i]}, {one}, {acc}")
        self.stamp(1)
        self.reduce(acc)
        a(f"v_mul_f32 {mean}, 0x3b000000, {acc}")
        a(f"v_cvt_pk_bf16_f32 {negm}, 0, -{mean}")
        a(f"v_readlane_b32 {sT[2]}, {negm}, 63")
        for i in range(4):
            a(f"v_lshlrev_b32 {xf[2*i]}, 16, {x[i]}")
            a(f"v_and_b32 {xf[2*i+1]}, 0xffff0000, {x[i]}")
        a(f"v_add_f32 {mean}, {mean}, {negm}")
        for i in range(4):
            a(f"v_pk_add_f32 {xf[2*i:2*i+2]}, {xf[2*i:2*i+2]}, {sTP[1]} op_sel_hi:[1,0]")
        a(f"v_pk_mul_f32 {s2}, {xf[0:2]}, {xf[0:2]}")
        for i in range(1, 4):
            a(f"v_pk_fma_f32 {s2}, {xf[2*i:2*i+2]}, {xf[2*i:2*i+2]}, {s2}")
        a(f"v_add_f32 {acc}, {s2[0]}, {s2[1]}")
        self.reduce(acc)
        a(f"v_mul_f32 {acc}, 0x3b000000, {acc}")
        a(f"v_fma_f32 {acc}, -{mean}, {mean}, {acc}")
        a(f"v_max_f32 {acc}, 0, {acc}")
        a(f"v_cvt_pk_bf16_f32 {acc}, 0, {acc}")
        a(f"v_add_f32 {acc}, 0x3727c5ac, {acc}")
        a(f"v_cvt_pk_bf16_f32 {acc}, 0, {acc}")
        a(f"v_sqrt_f32 {acc}, {acc}")
        a(f"v_cvt_pk_bf16_f32 {t}, 0, {acc}")
        a(f"v_rcp_f32 {t}, {t}")
        a(f"v_cvt_pk_bf16_f32 {kk[0]}, {negm}, {acc}")
        for i in range(8):
            a(f"v_cvt_pk_bf16_f32 {xf[i]}, 0, {xf[i]}")
        a(f"v_readlane_b32 {sT[4]}, {t}, 63")
        for i in range(4):
            a(f"v_pk_mul_f32 {xf[2*i:2*i+2]}, {xf[2*i:2*i+2]}, {sTP[2]} op_sel_hi:[1,0]")
        for i in range(8):
            a(f"v_cvt_pk_bf16_f32 {xf[i]}, 0, {xf[i]}")
        for i in range(4):
            a(f"v_cvt_pk_f16_f32 {x[i]}, {xf[2*i]}, {xf[2*i+1]}")
            a(f"v_and_or_b32 {x[i]}, {x[i]}, {msk}, {sT1 if i & 1 else sT0}")
        a(f"ds_write2st64_b64 {self.sw2}, {x[0:2]}, {x[2:4]} offset1:16")
        a("s_waitcnt lgkmcnt(0)")
        a("s_barrier")
        a(f"ds_read_b128 {G0}, {self.sr}")
        a(f"ds_read_b128 {G1}, {self.sr} offset:8192")
        for i in range(4):
            a(f"v_lshlrev_b32 {wf[2*i]}, 16, {wr[i]}")
            a(f"v_and_b32 {wf[2*i+1]}, 0xffff0000, {wr[i]}")
        a(f"global_store_dwordx4 {self.ta}, {G0}, {pWS} sc1")
        a(f"global_store_dwordx4 {self.tb}, {G1}, {pWS} sc1")
        a(f"v_pk_mul_f32 {s2}, {xf[0:2]}, {wf[0:2]}")
        for i in range(1, 4):
            a(f"v_pk_fma_f32 {s2}, {xf[2*i:2*i+2]}, {wf[2*i:2*i+2]}, {s2}")
        a(f"v_add_f32 {acc}, {s2[0]}, {s2[1]}")
        self.reduce(acc)
        a(f"v_cvt_pk_bf16_f32 {acc}, 0, {acc}")
        a(f"v_ashrrev_i32 {t}, 31, {acc}")
        a(f"v_or_b32 {t}, 0x80000000, {t}")
        a(f"v_xor_b32 {t}, {t}, {acc}")
        a(f"v_and_b32 {t}, 0xffff0000, {t}")
        a(f"v_or_b32 {kk[1]}, {sROWK}, {t}")
        a(f"v_mov_b32 {negm}, 1")
        a(f"s_mov_b32 exec_lo, 0")
        a(f"s_mov_b32 exec_hi, 0x80000000")
        a(f"ds_max_u64 {mi}, {kk} offset:{M_KEY}")
        a(f"ds_add_rtn_u32 {negm}, {mi}, {negm} offset:{M_CNT}")
        a(f"ds_read_b32 {pk[0]}, {mi} offset:{M_KEY + 4}")
        a(f"ds_read_b32 {pk[2]}, {mi} offset:{M_KEY}")
        a(f"s_mov_b64 exec, -1")
        a.end()
        self.stamp(2)
        def publish():
            a(f"v_readlane_b32 {sT[0]}, {negm}, 63")
            a(f"s_cmp_eq_u32 {sT[0]}, 7")
            a(f"s_cselect_b32 exec_hi, 0x80000000, 0")
            a(f"s_mov_b32 exec_lo, 0")
            a(f"global_store_dwordx2 {ad}, {pk[0:2]}, {pWS} sc1")
            a(f"global_store_dwordx2 {ad}, {pk[2:4]}, {pWS} offset:{W_CST - W_CAND} sc1")
            a(f"s_mov_b64 exec, -1")
            V.release("negm", "pk", "ad")
        V.release("acc", "xf", "mean", "s2", "st", "x", "wr", "G0", "G1", "sw", "sw2", "sr", "ta0", "tb0", "wf", "msk", "kk", "smi")
        return publish

    def tab(self, role, publish):
        a, V = self.a, self.V
        par = self.par
        h = 0 if role == "U" else 1
        sel = sT[8]
        la = V.alloc("la"); C = V.alloc("C", 2); dt = V.alloc("dt", 2); mx = V.alloc("mx"); t = V.alloc("tt")
        aa = la; bb = V.alloc("bb")
        e1 = V.alloc("e1", 2); e8 = V.alloc("e8", 2); e256 = V.alloc("e256", 2); F2 = V.alloc("F2", 2)
        ad = V.alloc("tad")
        cv = [V.alloc(f"cv{i}") for i in range(6)]
        ncv = [0]
        def put(row, r, g):
            c = cv[ncv[0] % 6]; ncv[0] += 1
            if g:
                a(f"v_cvt_pk_f16_f32 {c}, {r[0]}, -{r[1]}")
            else:
                a(f"v_cvt_pk_f16_f32 {c}, {r[0]}, {r[1]}")
            a(f"ds_write_b32 {ad}, {c} offset:{row*ROWS}")
        a.begin()
        a(f"s_lshl_b32 {sT[9]}, {sC}, 4")
        a(f"s_lshr_b64 {sTP[1]}, {sLDT}, {sT[9]}")
        a(f"s_lshl_b32 {sT[2]}, {sT[2]}, 16")
        a(f"v_mov_b32 {dt[0]}, {sT[2]}")
        a(f"v_mul_f32 {dt[0]}, {LOG2E:#x}, {dt[0]}")
        a(f"v_exp_f32 {dt[0]}, {dt[0]}")
        if h == 0:
            a(f"v_lshlrev_b32 {la}, 16, {par[0]}")
            a(f"v_lshlrev_b32 {bb}, 16, {par[1]}")
            a(f"v_lshlrev_b32 {C[0]}, 16, {par[2]}")
            a(f"v_lshlrev_b32 {C[1]}, 16, {par[3]}")
        else:
            a(f"v_and_b32 {la}, 0xffff0000, {par[0]}")
            a(f"v_and_b32 {bb}, 0xffff0000, {par[1]}")
            a(f"v_and_b32 {C[0]}, 0xffff0000, {par[2]}")
            a(f"v_and_b32 {C[1]}, 0xffff0000, {par[3]}")
        a(f"v_mul_f32 {la}, {LOG2E:#x}, {la}")
        a(f"v_exp_f32 {la}, {la}")
        a(f"v_cvt_pk_bf16_f32 {dt[0]}, 0, {dt[0]}")
        a(f"v_cvt_pk_bf16_f32 {la}, 0, {la}")
        a.end()
        publish()
        a.begin()
        a(f"s_lshr_b32 {sT[0]}, {sC}, 1")
        a(f"s_mul_i32 {sT[0]}, {sT[0]}, {TABP}")
        a(f"s_and_b32 {sT[1]}, {sC}, 1")
        a(f"s_lshl_b32 {sT[1]}, {sT[1]}, 9")
        a(f"s_add_u32 {sT[0]}, {sT[0]}, {sT[1]}")
        if h: a(f"s_add_u32 {sT[0]}, {sT[0]}, 256")
        a(f"v_add_u32 {ad}, {sT[0]}, {self.l4}")
        a(f"v_mul_f32 {aa}, {la}, {dt[0]}")
        a(f"v_mul_f32 {aa}, {LOG2E | 0x80000000:#x}, {aa}")
        a(f"v_mul_f32 {bb}, {bb}, {dt[0]}")
        a(f"v_mul_f32 {bb}, {INV2PI:#x}, {bb}")
        a(f"v_and_b32 {par[2]}, 0x7fff7fff, {par[2]}")
        a(f"v_and_b32 {par[3]}, 0x7fff7fff, {par[3]}")
        a(f"v_pk_max_u16 {mx}, {par[2]}, {par[3]}")
        a(f"v_lshlrev_b32 {t}, 16, {mx}")
        a(f"v_max_u32 {mx}, {mx}, {t}")
        def base(e, k):
            tm = par[0]; tf = par[1]
            if k == 1:
                a(f"v_exp_f32 {tm}, {aa}")
                a(f"v_fract_f32 {tf}, {bb}")
            else:
                lit = {8: "0x41000000", 256: "0x43800000"}[k]
                a(f"v_mul_f32 {tm}, {lit}, {aa}")
                a(f"v_mul_f32 {tf}, {lit}, {bb}")
                a(f"v_exp_f32 {tm}, {tm}")
                a(f"v_fract_f32 {tf}, {tf}")
            a(f"v_cos_f32 {e[0]}, {tf}")
            a(f"v_sin_f32 {e[1]}, {tf}")
            a(f"v_pk_mul_f32 {e}, {e}, {par[0:2]} op_sel_hi:[1,0]")
        base(e8, 8)
        self.reduce(mx, "v_max_u32")
        a(f"v_and_b32 {mx}, 0xffff0000, {mx}")
        a(f"v_mul_f32 {mx}, {mx}, {dt[0]}")
        a(f"v_readlane_b32 {sT[2]}, {mx}, 63")
        a(f"s_lshr_b32 {sT[2]}, {sT[2]}, 23")
        a(f"s_max_u32 {sT[2]}, {sT[2]}, 10")
        a(f"s_min_u32 {sT[2]}, {sT[2]}, 254")
        a(f"s_sub_u32 {sT[4]}, 261, {sT[2]}")
        a(f"s_lshl_b32 {sT[4]}, {sT[4]}, 23")
        a(f"s_sub_u32 {sT[6]}, {sT[2]}, 6")
        a(f"s_lshl_b32 {sT[6]}, {sT[6]}, 23")
        a(f"v_pk_mul_f32 {C}, {C}, {dt} op_sel_hi:[1,0]")
        base(e1, 1)
        base(e256, 256)
        a(f"v_mov_b32 {t}, 0x3c00")
        a(f"ds_write_b32 {ad}, {t}")
        put(1, e8, False)
        self.cmul(F2, e8, e8)
        put(2, F2, False)
        Fa = [V.alloc(f"Fa{i}", 2) for i in range(2)]; Fb = [V.alloc(f"Fb{i}", 2) for i in range(2)]
        pe, po = F2, e8
        G = [C] + [V.alloc(f"G{i}", 2) for i in range(1, 8)]
        H = [V.alloc(f"H{i}", 2) for i in range(4)]
        def gsteps():
            a(f"v_pk_mul_f32 {C}, {C}, {sTP[2]} op_sel_hi:[1,0]"); put(32, C, True); yield
            for i in range(1, 8):
                self.cmul(G[i], G[i-1], e1); put(32 + i, G[i], True); yield
            self.cmul(H[0], G[0], e256); put(40, H[0], True); yield
            self.cmul(H[1], G[4], e256); put(44, H[1], True); yield
            self.cmul(H[2], G[2], e256); put(41, H[2], True); yield
            self.cmul(H[3], G[6], e256); put(45, H[3], True); yield
            self.cmul(G[1], H[0], e256); put(42, G[1], True); yield
            self.cmul(G[3], H[1], e256); put(43, G[3], True); yield
            self.cmul(G[5], G[1], e256); put(46, G[5], True); yield
            self.cmul(G[7], G[3], e256); put(47, G[7], True); yield
            p = G[5]
            for i, q in enumerate((H[0], H[1], H[2], H[3], G[2])):
                self.cmul(q, p, e256); put(48 + i, q, True); p = q; yield
        gs = gsteps()
        for k in range(3, 32):
            if k & 1:
                r = Fb[(k >> 1) & 1]; self.cmul(r, po, F2); po = r
            else:
                r = Fa[(k >> 1) & 1]; self.cmul(r, pe, F2); pe = r
            put(k, r, False)
            if k >= 9: next(gs, None)
        for _ in gs: pass
        if role == "K":
            a(f"s_lshl_b32 {sT[0]}, {sC}, 2")
            a(f"s_add_u32 {sT[0]}, {sT[0]}, {MISC + M_INV}")
            a(f"v_mov_b32 {t}, {sT[0]}")
            a(f"v_mov_b32 {mx}, {sT[6]}")
            a(f"ds_write_b32 {t}, {mx}")
        a.end()
        for n in ["la", "C", "dt", "mx", "tt", "bb", "e1", "e8", "e256", "F2", "tad", "par"] + [f"cv{i}" for i in range(6)] + \
                 [f"Fa{i}" for i in range(2)] + [f"Fb{i}" for i in range(2)] + [f"G{i}" for i in range(1, 8)] + [f"H{i}" for i in range(4)]:
            V.release(n)
        a("s_waitcnt lgkmcnt(0)")
        self.stamp(3)
        a("s_barrier")

    def dump_lds(self, tag):
        if self.dump == tag:
            self.a("s_branch L_DUMP")
            self.a.label(self.a.newlabel("L_dead"))

    def emit_dump(self):
        a = self.a
        a.label("L_DUMP")
        a("s_mov_b64 exec, -1")
        a("s_waitcnt vmcnt(0) lgkmcnt(0)")
        a("s_barrier")
        a("v_lshlrev_b32 v1, 4, v0")
        a(f"s_mul_i32 s50, s2, {LDS}")
        a(f"s_add_u32 s50, s50, {W_DUMP}")
        a("v_add_u32 v2, s50, v1")
        for i in range(20):
            a("ds_read_b128 v[4:7], v1")
            a("global_store_dwordx4 v2, v[4:7], s[32:33]")
            a("v_add_u32 v1, 0x2000, v1")
            a("v_add_u32 v2, 0x2000, v2")
        a("s_branch L_FIN")

    def finish(self):
        a = self.a
        a.label("L_FIN")
        if self.ts:
            self.stamp(11)
            a("s_mov_b64 exec, -1")
            a("s_waitcnt lgkmcnt(0)")
            a("v_mov_b32 v1, 0")
            for i in range(12):
                a(f"v_writelane_b32 v1, {sTS[2*i]}, {i}")
            a(f"s_lshl_b32 s50, s2, 3")
            a(f"s_add_u32 s50, s50, {sW}")
            a(f"s_lshl_b32 s50, s50, 6")
            a(f"s_add_u32 s50, s50, {W_TS}")
            a("v_and_b32 v2, 63, v0")
            a("v_lshlrev_b32 v2, 2, v2")
            a("v_add_u32 v2, s50, v2")
            a("s_mov_b64 exec, 0xffff")
            a("global_store_dword v2, v1, s[32:33]")
        a.label("L_EXIT")
        a("s_endpgm")
        a.label("L_END")

    def build(self):
        from gen_roles import urole, krole
        a = self.a
        a.label("L_BEGIN")
        self.prologue()
        snap = self.V.snapshot()
        urole(self)
        a("s_branch L_FIN")
        self.V.restore(snap)
        a.label("L_KROLE")
        krole(self)
        if self.dump:
            a("s_branch L_FIN")
            self.emit_dump()
        self.finish()
        body = a.text()
        ref = open(REF).read()
        head = ref[:ref.index(f"{NAME}_kernel:") + len(f"{NAME}_kernel:")]
        head = head.replace("; @launch grid=(4096,1,1) block=(256,1,1) lds=0", f"; @launch grid=(256,1,1) block=(512,1,1) lds={LDS}")
        foot = ref[ref.index('.section .rodata,"a"'):]
        nv = (self.V.high + 3) // 4 * 4
        foot = foot.replace(".amdhsa_next_free_vgpr 256", f".amdhsa_next_free_vgpr {nv}").replace(".amdhsa_accum_offset 256", f".amdhsa_accum_offset {nv}")
        return head + "\n" + body + "\n" + foot


if __name__ == "__main__":
    import argparse
    p = argparse.ArgumentParser()
    p.add_argument("-o", default=f"cdna_kernels/{NAME}.s")
    p.add_argument("--dump", default=None)
    p.add_argument("--ts", action="store_true")
    p.add_argument("--opt", action="append", default=[])
    g = p.parse_args()
    opts = dict((o.split("=") + ["1"])[:2] for o in g.opt)
    gen = Gen(g.dump, g.ts, opts)
    txt = gen.build()
    open(g.o, "w").write(txt)
    print("written", g.o, "vgprs", gen.V.high, "lines", txt.count("\n"))
```

```python
from gen import *


def silu_rb(G, out, x, tmp):
    a = G.a
    n = x.n
    a(f"s_mov_b32 {sX[0]}, {LOG2E | 0x80000000:#x}")
    for i in range(0, n, 2):
        a(f"v_pk_mul_f32 {tmp[i:i+2]}, {x[i:i+2]}, {Reg('s', sX[0].b, 2)} op_sel_hi:[1,0]")
    for i in range(n):
        a(f"v_exp_f32 {tmp[i]}, {tmp[i]}")
    for i in range(0, n, 2):
        a(f"v_pk_add_f32 {tmp[i:i+2]}, {tmp[i:i+2]}, 1.0 op_sel_hi:[1,0]")
    for i in range(n):
        a(f"v_rcp_f32 {tmp[i]}, {tmp[i]}")
    for i in range(0, n, 2):
        a(f"v_pk_mul_f32 {tmp[i:i+2]}, {tmp[i:i+2]}, {x[i:i+2]}")
    for i in range(n):
        a(f"v_cvt_pk_bf16_f32 {out[i]}, 0, {tmp[i]}")


def urole(G):
    a, V = G.a, G.V
    lane, l4, l16 = G.lane, G.l4, G.l16
    sTile = [S(18), S(19), S(3), S(63)]
    sNT = S(70)
    ao = [V.alloc(f"ao{i}") for i in range(4)]
    to = [V.alloc(f"to{i}") for i in range(4)]
    uoa = [V.alloc(f"uoa{i}") for i in range(4)]
    tq = V.alloc("tq"); uq = V.alloc("uq"); up = V.alloc("up"); mi = V.alloc("mi"); r64 = V.alloc("r64")
    a15 = V.alloc("a15"); g4 = V.alloc("g4"); ca = V.alloc("ca"); tg = V.alloc("tg", 2)
    wda = V.alloc("wda", 2); t = V.alloc("ut"); wd = V.alloc("wd", 16)
    a(f"v_mov_b32 {t}, 0")
    a(f"v_add_u32 {mi}, {MISC}, {l4}")
    a(f"ds_write_b32 {mi}, {t}")
    G.stage_addrs()
    for i, tt in enumerate((0, 3, 4, 7)):
        a(f"s_xor_b32 {sTile[i]}, {sPART}, {tt}")
    a(f"s_lshl_b32 {sT[0]}, {sW}, 2")
    a(f"s_lshr_b32 {sT[0]}, 0x6521, {sT[0]}")
    a(f"s_and_b32 {sT[0]}, {sT[0]}, 15")
    a(f"s_xor_b32 {sNT}, {sT[0]}, {sPART}")
    a(f"v_and_b32 {a15}, 15, {lane}")
    a(f"v_lshrrev_b32 {g4}, 4, {lane}")
    a(f"s_lshl_b32 {sT[1]}, {sW}, 6")
    a(f"v_lshl_add_u32 {r64}, {a15}, 2, {g4}")
    a(f"v_add_u32 {r64}, {sT[1]}, {r64}")
    a(f"s_lshl_b32 {sT[2]}, {sG}, 3")
    a(f"s_lshl_b32 {sT[4]}, {sG}, 15")
    a(f"s_add_u32 {sT[4]}, {sT[4]}, {W_T}")
    a(f"s_lshl_b32 {sT[5]}, {sW}, 8")
    a(f"s_add_u32 {sT[5]}, {sT[5]}, {sT[4]}")
    a(f"v_lshlrev_b32 {tq}, 10, {g4}")
    a(f"v_lshl_add_u32 {tq}, {a15}, 4, {tq}")
    a(f"v_lshlrev_b32 {uq}, 10, {r64}")
    a(f"v_lshlrev_b32 {up}, 1, {r64}")
    for i in range(4):
        a(f"s_lshl_b32 {sT[3]}, {sTile[i]}, 18")
        a(f"s_add_u32 {sT[3]}, {sT[3]}, {sT[2]}")
        a(f"v_add_u32 {ao[i]}, {sT[3]}, {uq}")
        a(f"s_lshl_b32 {sT[3]}, {sTile[i]}, 12")
        a(f"s_add_u32 {sT[3]}, {sT[3]}, {sT[5]}")
        a(f"v_add_u32 {to[i]}, {sT[3]}, {tq}")
        a(f"s_lshl_b32 {sT[3]}, {sTile[i]}, 9")
        a(f"v_add_u32 {uoa[i]}, {sT[3]}, {up}")
    a(f"s_lshl_b32 {sT[3]}, {sNT}, 12")
    a(f"s_add_u32 {sT[3]}, {sT[3]}, {sT[4]}")
    a(f"v_add_u32 {tq}, {sT[3]}, {l16}")
    a(f"s_lshl_b32 {sT[0]}, {sNT}, 9")
    a(f"v_lshlrev_b32 {up}, 3, {lane}")
    a(f"v_add_u32 {uq}, {sT[0]}, {up}")
    a(f"s_mul_i32 {sT[0]}, {sW}, {UTC}")
    a(f"v_add_u32 {up}, {sT[0]}, {up}")
    a(f"v_mov_b32 {mi}, {MISC}")
    a(f"v_lshlrev_b32 {ca}, 5, {lane}")
    a(f"v_add_u32 {ca}, {W_CAND}, {ca}")
    a(f"s_lshl_b32 {sT[0]}, {sSIG}, 14")
    a(f"s_lshl_b32 {sT[1]}, {sC}, 8")
    a(f"s_add_u32 {sT[0]}, {sT[0]}, {sT[1]}")
    a(f"s_add_u32 {sT[0]}, {sT[0]}, 4096")
    a(f"v_add_u32 {wda[0]}, {sT[0]}, {l4}")
    a(f"v_add_u32 {wda[1]}, 0x2000, {wda[0]}")
    a(f"v_and_b32 {t}, 7, {lane}")
    a(f"v_mul_u32_u24 {t}, 3, {t}")
    pub = G.stats("U")
    def pub2():
        pub()
        a(f"s_mov_b64 exec, {sFFN}")
        for f in range(16):
            a(f"global_load_dword {wd[f]}, {wda[f >> 3]}, {pWD} offset:{(f % 8 - 4) * 1024}")
        a(f"s_mov_b64 exec, -1")
    G.tab("U", pub2)
    G.dump_lds("tab")
    V.release("wda")
    cd = V.alloc("cd", 8)
    hq = [V.alloc(f"hq{i}", 2) for i in range(4)]
    go = [V.alloc(f"go{i}", 4) for i in range(4)]
    def ldcand():
        a(f"global_load_dwordx4 {cd[0:4]}, {ca}, {pWS} sc1")
        a(f"global_load_dwordx4 {cd[4:8]}, {ca}, {pWS} offset:16 sc1")
    def ldT(i):
        if i < 4:
            a(f"global_load_dwordx2 {hq[i]}, {tq}, {pWS} offset:{1024*i + 8} sc1")
        else:
            a(f"global_load_dwordx4 {go[i-4]}, {to[i-4]}, {pWS} sc1")
    H = hq + [g[2:4] for g in go]
    ldcand()
    for i in range(8): ldT(i)
    a(f"v_alignbit_b32 {tg[0]}, {sTAG}, {sTAG}, {t}")
    a(f"v_lshrrev_b32 {tg[1]}, 8, {tg[0]}")
    a(f"v_and_b32 {tg[0]}, {TM:#x}, {tg[0]}")
    a(f"v_and_b32 {tg[1]}, {TM:#x}, {tg[1]}")
    a(f"s_lshl_b32 {sD[0]}, {sDSK[0]}, 16")
    a(f"s_and_b32 {sD[1]}, {sDSK[0]}, 0xffff0000")
    a(f"s_lshl_b32 {sD[2]}, {sDSK[1]}, 16")
    a(f"s_and_b32 {sD[3]}, {sDSK[1]}, 0xffff0000")
    a(f"s_mov_b32 {sSPIN}, {SPIN}")
    a("s_branch L_CP_CHK")
    a.label("L_CP_RETRY")
    ldcand()
    a("s_waitcnt vmcnt(0)")
    a.label("L_CP_CHK")
    a(f"v_xor_b32 {t}, {sTAG}, {cd[1]}")
    for k in (3, 5, 7):
        a(f"v_bitop3_b32 {t}, {t}, {cd[k]}, {sTAG} bitop3:0xf6")
    a(f"v_cmp_ne_u32 vcc, 0, {t}")
    a(f"s_cbranch_vccz L_CP_OK")
    a(f"s_sub_u32 {sSPIN}, {sSPIN}, 1")
    a(f"s_cbranch_scc0 L_CP_RETRY")
    a.label("L_CP_OK")
    G.stamp(4)
    a(f"v_max3_u32 {t}, {cd[0]}, {cd[2]}, {cd[4]}")
    a(f"v_max_u32 {t}, {t}, {cd[6]}")
    G.reduce(t, "v_max_u32")
    a(f"v_readlane_b32 {sT[0]}, {t}, 63")
    a(f"s_and_b32 {sT[1]}, {sT[0]}, 0x7ff")
    a(f"s_sub_u32 {sIDX}, 0x7ff, {sT[1]}")
    a(f"s_ashr_i32 {sT[1]}, {sT[0]}, 31")
    a(f"s_not_b32 {sT[1]}, {sT[1]}")
    a(f"s_or_b32 {sT[1]}, {sT[1]}, 0x80000000")
    a(f"s_xor_b32 {sT[0]}, {sT[0]}, {sT[1]}")
    a(f"s_and_b32 {sRB}, {sT[0]}, 0xffff0000")
    xr = cd[6]; st = cd[4:6]; sta = cd[7]
    a(f"s_lshl_b32 {sT[0]}, {sIDX}, 10")
    a(f"s_lshl_b32 {sT[1]}, {sC}, 8")
    a(f"s_add_u32 {sT[0]}, {sT[0]}, {sT[1]}")
    a(f"v_add_u32 {t}, {sT[0]}, {l4}")
    a(f"s_lshr_b32 {sT[0]}, {sIDX}, 5")
    a(f"s_lshl_b32 {sT[0]}, {sT[0]}, 2")
    a(f"s_and_b32 {sT[1]}, {sIDX}, 3")
    a(f"s_add_u32 {sT[0]}, {sT[0]}, {sT[1]}")
    a(f"s_lshl_b32 {sT[0]}, {sT[0]}, 3")
    a(f"s_add_u32 {sT[0]}, {sT[0]}, {W_CST}")
    a(f"v_mov_b32 {sta}, {sT[0]}")
    a(f"s_mov_b64 exec, {sFFN}")
    a(f"global_load_dword {xr}, {t}, {pU}")
    a(f"global_load_dwordx2 {st}, {sta}, {pWS} sc1")
    a(f"s_mov_b64 exec, -1")
    tf = t
    a(f"s_mov_b32 {sSPIN}, {SPIN}")
    a.label("L_TF")
    a(f"ds_read_b32 {tf}, {mi} offset:{M_TABF}")
    a(f"v_cmp_ne_u32 vcc, 4, {tf}")
    a(f"s_cbranch_vccz L_TF_OK")
    a(f"s_sub_u32 {sSPIN}, {sSPIN}, 1")
    a(f"s_cbranch_scc0 L_TF")
    a.label("L_TF_OK")
    z = cd[0:2]; chk = cd[2]
    cq = [V.alloc(f"cq{i}", 2) for i in range(4)]
    a(f"v_mov_b32 {z[0]}, 0")
    a(f"v_mov_b32 {z[1]}, 0")
    a(f"ds_write_b64 {up}, {z}")
    a(f"s_mov_b32 {sT[2]}, 0x05040100")
    a(f"s_mov_b32 {sT[3]}, 0x07060302")
    a(f"s_mov_b32 {sT[4]}, {TM:#x}")
    a(f"s_mov_b32 {sSPIN}, {SPIN}")
    a("s_branch L_TP")
    a.label("L_TR")
    for i in range(8):
        a(f"v_bitop3_b32 {chk}, {H[i][0]}, {H[i][1]}, {sT[4]} bitop3:0xa8")
        a(f"v_cmp_ne_u32 vcc, 0, {chk}")
        a(f"s_cmp_lg_u64 vcc, 0")
        a(f"s_cselect_b64 exec, -1, 0")
        ldT(i)
        a(f"s_not_b64 exec, exec")
        a(f"v_xor_b32 {H[i][0]}, {H[i][0]}, {tg[0]}").nowait = True
        a(f"v_xor_b32 {H[i][1]}, {H[i][1]}, {tg[1]}").nowait = True
        a(f"s_mov_b64 exec, -1")
    a("s_waitcnt vmcnt(0)")
    a.label("L_TP")
    for i in range(8):
        a(f"v_xor_b32 {H[i][0]}, {H[i][0]}, {tg[0]}")
        a(f"v_xor_b32 {H[i][1]}, {H[i][1]}, {tg[1]}")
        if i == 0:
            a(f"v_or_b32 {chk}, {H[i][0]}, {H[i][1]}")
        else:
            a(f"v_or3_b32 {chk}, {chk}, {H[i][0]}, {H[i][1]}")
        if i & 1 and i < 4:
            for c in range(4):
                a(f"v_perm_b32 {cq[c][i >> 1]}, {hq[i][c >> 1]}, {hq[i-1][c >> 1]}, {sT[2 + (c & 1)]}")
        if i == 3:
            for c in range(4):
                a(f"ds_write_b64 {uq}, {cq[c]} offset:{c*UTC + 512}")
        if i >= 4:
            for c in range(4):
                op = "ds_write_b16_d16_hi" if c & 1 else "ds_write_b16"
                a(f"{op} {uoa[i-4]}, {H[i][c>>1]} offset:{c*UTC + 512}")
    a(f"v_and_b32 {chk}, {TM:#x}, {chk}")
    a(f"v_cmp_ne_u32 vcc, 0, {chk}")
    a(f"s_cbranch_vccz L_TOK")
    a(f"s_sub_u32 {sSPIN}, {sSPIN}, 1")
    a(f"s_cbranch_scc0 L_TR")
    a.label("L_TOK")
    a("s_waitcnt lgkmcnt(0)")
    G.stamp(5)
    a("s_barrier")
    G.dump_lds("ut")
    for n in ["tq", "uq", "up", "ca", "tg"] + [f"{p}{i}" for p in ("hq", "cq", "uoa", "to") for i in range(4)]:
        V.release(n)
    a(f"s_cmp_eq_u64 {sFFN}, 0")
    a(f"s_cbranch_scc1 L_NOFFN")
    ffn(G, wd, cd, t, a15, g4, mi)
    a.label("L_NOFFN")
    G.stamp(10)
    V.release("cd", "wd", "ut", "a15", "g4")
    xf = [V.alloc(f"xf{i}", 4) for i in range(4)]
    xn = [V.alloc(f"xn{i}", 4) for i in range(4)]
    inv = V.alloc("inv", 4); t2 = V.alloc("t2", 2)
    a(f"ds_read_b128 {inv}, {mi} offset:{M_INV}")
    a(f"s_or_b32 {sT[0]}, s2, {sW}")
    a(f"s_cmp_eq_u32 {sT[0]}, 0")
    a(f"s_cselect_b64 exec, 1, 0")
    a(f"s_add_u32 {sT[1]}, {sE}, 1")
    a(f"v_mov_b32 {t2[0]}, 0")
    a(f"v_mov_b32 {t2[1]}, {sT[1]}")
    a(f"global_store_dword {t2[0]}, {t2[1]}, {pWS} sc1")
    a(f"s_mov_b64 exec, -1")
    e1 = [V.alloc(f"e1{i}", 4) for i in range(4)]
    gg = [V.alloc(f"gg{i}", 4) for i in range(4)]
    p = [V.alloc(f"p{i}", 4) for i in range(2)]
    ea = V.alloc("ea"); cn = V.alloc("cn")
    sav = V.alloc("sav", 14)
    a(f"v_lshlrev_b32 {ea}, 2, {r64}")
    sOW, sOM = S(71), S(44, 2)
    a(f"s_lshr_b32 {sOW}, {sIDX}, 6")
    a(f"s_bfe_u32 {sT[0]}, {sIDX}, 0x40002")
    a(f"s_and_b32 {sT[1]}, {sIDX}, 3")
    a(f"s_lshl_b32 {sT[1]}, {sT[1]}, 4")
    a(f"s_or_b32 {sT[0]}, {sT[0]}, {sT[1]}")
    a(f"s_lshl_b64 {sOM}, 1, {sT[0]}")
    sOWN = S(46)
    a(f"s_mov_b32 {sOWN}, 0")
    for i in range(4):
        a.begin()
        for k in range(2):
            a(f"v_cvt_f32_f16 {xn[i][2*k]}, {go[i][2+k]}")
            a(f"v_cvt_f32_f16_sdwa {xn[i][2*k+1]}, {go[i][2+k]} dst_sel:DWORD dst_unused:UNUSED_PAD src0_sel:WORD_1")
            a(f"v_lshlrev_b32 {xf[i][2*k]}, 16, {go[i][k]}")
            a(f"v_and_b32 {xf[i][2*k+1]}, 0xffff0000, {go[i][k]}")
        for k in (0, 2):
            a(f"v_pk_mul_f32 {e1[i][k:k+2]}, {xn[i][k:k+2]}, {sD[k:k+2]}")
        for k in range(4):
            a(f"v_cvt_pk_bf16_f32 {e1[i][k]}, 0, {e1[i][k]}")
        silu_rb(G, gg[i], xn[i], gg[i])
        a.end()
        if i == 0:
            pass
    for i in range(4):
        pp = p[i & 1]
        a(f"s_mov_b32 {sSPIN}, {SPIN}")
        a.label(f"L_EX{i}")
        a(f"ds_read_b32 {cn}, {mi} offset:{M_EXC + 4*i}")
        a(f"v_cmp_ne_u32 vcc, 4, {cn}")
        a(f"s_cbranch_vccz L_EX{i}_OK")
        a(f"s_sub_u32 {sSPIN}, {sSPIN}, 1")
        a(f"s_cbranch_scc0 L_EX{i}")
        a.label(f"L_EX{i}_OK")
        for c in range(4):
            a(f"ds_read_b32 {pp[c]}, {ea} offset:{EX + i*4096 + c*1024}")
        a.begin()
        for k in range(4):
            a(f"v_cvt_pk_bf16_f32 {pp[k]}, 0, {pp[k]}")
        for k in (0, 2):
            a(f"v_pk_fma_f32 {pp[k:k+2]}, {pp[k:k+2]}, {inv[k:k+2]}, {e1[i][k:k+2]}")
        for k in range(4):
            a(f"v_cvt_pk_bf16_f32 {e1[i][k]}, 0, {pp[k]}")
        for k in (0, 2):
            a(f"v_pk_mul_f32 {pp[k:k+2]}, {e1[i][k:k+2]}, {gg[i][k:k+2]}")
        for k in range(4):
            a(f"v_cvt_pk_bf16_f32 {pp[k]}, 0, {pp[k]}")
        for k in (0, 2):
            a(f"v_pk_add_f32 {pp[k:k+2]}, {pp[k:k+2]}, {xf[i][k:k+2]}")
        a(f"v_cvt_pk_bf16_f32 {gg[i][0]}, {pp[0]}, {pp[1]}")
        a(f"v_cvt_pk_bf16_f32 {gg[i][1]}, {pp[2]}, {pp[3]}")
        a(f"s_lshl_b32 {sT[0]}, {sTile[i]}, 2")
        a(f"s_add_u32 {sT[0]}, {sT[0]}, {sW}")
        a(f"s_cmp_eq_u32 {sT[0]}, {sOW}")
        a(f"s_cselect_b64 {sTP[1]}, {sOM}, 0")
        a(f"s_andn2_b64 exec, -1, {sTP[1]}")
        a(f"global_store_dwordx2 {ao[i]}, {gg[i][0:2]}, {pOUT}")
        a(f"s_mov_b64 exec, -1")
        a.end()
        a(f"s_cmp_eq_u32 {sT[0]}, {sOW}")
        a(f"s_cbranch_scc0 L_NS{i}")
        a(f"s_mov_b32 {sOWN}, 1")
        for k in (0, 2):
            a(f"v_pk_mov_b32 {sav[k:k+2]}, {e1[i][k:k+2]}, {e1[i][k:k+2]} op_sel:[0,1]")
            a(f"v_pk_mov_b32 {sav[4+k:6+k]}, {xf[i][k:k+2]}, {xf[i][k:k+2]} op_sel:[0,1]")
            a(f"v_pk_mov_b32 {sav[8+k:10+k]}, {xn[i][k:k+2]}, {xn[i][k:k+2]} op_sel:[0,1]")
        a(f"v_mov_b32 {sav[12]}, {ao[i]}")
        a.label(f"L_NS{i}")
        G.stamp(6 + i)
    a(f"s_cmp_eq_u32 {sOWN}, 0")
    a(f"s_cbranch_scc1 L_FIN")
    q = [e1[0], e1[1], e1[2]]
    ga = ea
    a(f"s_mul_i32 {sT[0]}, {sG}, {W_FG}")
    a(f"s_add_u32 {sT[0]}, {sT[0]}, {W_FFN}")
    a(f"v_add_u32 {ga}, {sT[0]}, {l16}")
    a(f"v_mov_b32 {q[2][0]}, 0")
    a(f"v_mov_b32 {q[2][1]}, {sTAG}")
    a(f"v_mov_b32 {q[2][2]}, 0")
    a(f"v_mov_b32 {q[2][3]}, {sTAG}")
    a(f"s_mov_b32 {sSPIN}, {SPIN}")
    rs = gg[0]
    first = True
    a.label("L_GA")
    a(f"global_load_dwordx4 {q[0]}, {ga}, {pWS} sc1")
    a(f"global_load_dwordx4 {q[1]}, {ga}, {pWS} offset:1024 sc1")
    a(f"s_mov_b32 exec_hi, 0xfff")
    a(f"global_load_dwordx4 {q[2]}, {ga}, {pWS} offset:2048 sc1")
    a(f"s_mov_b32 exec_hi, -1")
    a(f"v_mov_b32 {rs[0]}, {sRB}")
    a(f"v_mul_f32 {rs[0]}, {LOG2E | 0x80000000:#x}, {rs[0]}")
    a(f"v_exp_f32 {rs[0]}, {rs[0]}")
    a(f"v_add_f32 {rs[0]}, 1.0, {rs[0]}")
    a(f"v_rcp_f32 {rs[0]}, {rs[0]}")
    a(f"v_cvt_pk_bf16_f32 {rs[0]}, 0, {rs[0]}")
    tags = [q[0][1], q[0][3], q[1][1], q[1][3], q[2][1], q[2][3]]
    a(f"v_xor_b32 {cn}, {sTAG}, {tags[0]}")
    for t in tags[1:]:
        a(f"v_bitop3_b32 {cn}, {cn}, {t}, {sTAG} bitop3:0xf6")
    a(f"v_cmp_ne_u32 vcc, 0, {cn}")
    a(f"s_cbranch_vccz L_GA_OK")
    a(f"s_sub_u32 {sSPIN}, {sSPIN}, 1")
    a(f"s_cbranch_scc0 L_GA")
    a.label("L_GA_OK")
    y0, y1 = q[0][0], q[0][2]
    a(f"v_add_f32 {y0}, {y0}, {q[1][0]}")
    a(f"v_add_f32 {y1}, {y1}, {q[1][2]}")
    a(f"v_add_f32 {y0}, {y0}, {q[2][0]}")
    a(f"v_add_f32 {y1}, {y1}, {q[2][2]}")
    a(f"v_permlane32_swap_b32 {y0}, {y1}")
    a(f"v_add_f32 {y0}, {y0}, {y1}")
    a(f"v_mov_b32 {y1}, {y0}")
    a(f"v_permlane16_swap_b32 {y0}, {y1}")
    a(f"v_add_f32 {y0}, {y0}, {y1}")
    for r in (2, 4, 8):
        a(f"v_add_f32_dpp {y0}, {y0}, {y0} row_ror:{r} row_mask:0xf bank_mask:0xf")
    a(f"v_cvt_pk_bf16_f32 {y0}, 0, {y0}")
    a(f"v_mul_f32 {y0}, {y0}, {rs[0]}")
    a(f"v_cvt_pk_bf16_f32 {y0}, 0, {y0}")
    for k, ln in enumerate((0, 32, 1, 33)):
        a(f"v_readlane_b32 {sT[k]}, {y0}, {ln}")
    B = gg[1]; g2 = gg[2]
    for k in (0, 2):
        a(f"v_pk_add_f32 {B[k:k+2]}, {sav[8+k:10+k]}, {sTP[k//2]}")
    for k in range(4):
        a(f"v_cvt_pk_bf16_f32 {B[k]}, 0, {B[k]}")
    silu_rb(G, g2, B, g2)
    for k in (0, 2):
        a(f"v_pk_mul_f32 {g2[k:k+2]}, {g2[k:k+2]}, {sav[k:k+2]}")
    for k in range(4):
        a(f"v_cvt_pk_bf16_f32 {g2[k]}, 0, {g2[k]}")
    for k in (0, 2):
        a(f"v_pk_add_f32 {g2[k:k+2]}, {g2[k:k+2]}, {sav[4+k:6+k]}")
    a(f"v_cvt_pk_bf16_f32 {B[0]}, {g2[0]}, {g2[1]}")
    a(f"v_cvt_pk_bf16_f32 {B[1]}, {g2[2]}, {g2[3]}")
    a(f"s_mov_b64 exec, {sOM}")
    a(f"global_store_dwordx2 {sav[12]}, {B[0:2]}, {pOUT}")


def conv(G, part, A, Zf, box, bA, wA, exA, mi):
    a, V = G.a, G.V
    tiles = OWN[part]
    snap = V.snapshot()
    acc = {T: V.alloc(f"acc{T}", 4) for T in tiles}
    NB = 8
    Bb = [V.alloc(f"B{i}", 4) for i in range(NB)]
    one = V.alloc("one")
    nR = max(tiles) - 3
    W = [V.alloc(f"W{i}", 4) for i in range(nR)]
    S9 = V.alloc("S9", 4); S7 = V.alloc("S7", 4)
    started = set()
    def mf(T, Af, Bf):
        c = acc[T] if T in started else "0"
        started.add(T)
        a(f"v_mfma_f32_16x16x32_f16 {acc[T]}, {Af}, {Bf}, {c}")
    loads = [(g, r) for g in range(max(tiles) + 1) for r in range(8)]
    def ld(i):
        g, r = loads[i]
        a(f"ds_read_b128 {Bb[i % NB]}, {bA} offset:{448 + 512*g - 64*r}")
    a(f"v_mov_b32 {one}, 1")
    for i in range(NB):
        ld(i)
    for R in range(nR):
        a(f"ds_read2_b64 {W[R]}, {wA} offset0:{64*R} offset1:{64*R+1}")
    extra = []
    for R in range(nR):
        extra.append(("box", R))
    seg3 = {T: [(R, T - R - 4) for R in range(nR) if T - R - 4 >= 0] for T in tiles}
    boxdone = set()
    def box_step(R):
        a(f"v_mfma_f32_16x16x32_f16 {S9}, {W[R]}, {box[0]}, 0")
        a(f"v_mfma_f32_16x16x32_f16 {S7}, {W[R]}, {box[1]}, 0")
    def box_cvt(R):
        for r in range(4):
            a(f"v_cvt_pk_f16_f32 {W[R][r]}, {S9[r]}, {S7[r]}")
        boxdone.add(R)
    slot = {T: i for i, T in enumerate(tiles)}
    def fin(T):
        a(f"ds_write_b128 {exA}, {acc[T]} offset:{EX + slot[T]*4096}")
        a(f"s_mov_b64 exec, 1")
        a(f"ds_add_u32 {mi}, {one} offset:{M_EXC + 4*slot[T]}")
        a(f"s_mov_b64 exec, -1")
    pend_fin = []
    for i, (g, r) in enumerate(loads):
        Bf = Bb[i % NB]
        for T in tiles:
            b = T - g
            if 0 <= b <= 3:
                mf(T, A[8*b + r], Bf)
            if b == 4 and r == 0:
                mf(T, A[32], Bf)
        if i + NB < len(loads):
            ld(i + NB)
        if r == 1 and 1 <= g <= nR:
            box_step(g - 1)
        if r == 4 and 1 <= g <= nR:
            box_cvt(g - 1)
        if r == 6:
            for T in tiles:
                for (R, d) in list(seg3[T]):
                    if R in boxdone:
                        mf(T, W[R], Zf[d]); seg3[T].remove((R, d))
        if r == 2 and pend_fin:
            for T in pend_fin: fin(T)
            pend_fin = []
        if r == 7 and g in tiles:
            assert not seg3[g], (part, g, seg3)
            pend_fin.append(g)
    for T in pend_fin: fin(T)
    V.restore(snap)


def krole(G):
    a, V = G.a, G.V
    lane, l4, l16 = G.lane, G.l4, G.l16
    ga = V.alloc("ga"); t = V.alloc("kt"); t2 = V.alloc("kt2")
    sGU = S(70)
    a(f"v_lshrrev_b32 {ga}, 1, {lane}")
    a(f"s_lshl_b32 {sT[0]}, {sC}, 7")
    a(f"v_add_u32 {ga}, {sT[0]}, {ga}")
    a(f"v_mul_u32_u24 {ga}, 2752, {ga}")
    a(f"v_and_b32 {t}, 16, {l16}")
    a(f"s_lshl_b32 {sT[0]}, {sSIG}, 5")
    a(f"v_add3_u32 {ga}, {ga}, {t}, {sT[0]}")
    a(f"s_lshl_b32 {sGU}, {sC}, 13")
    a(f"s_add_u32 {sGU}, {sGU}, {GU}")
    def dma(ptr, off, sgn):
        a(f"s_mov_b64 exec, {sFFN}")
        for i in range(4):
            ii = i if sgn > 0 else 3 - i
            a(f"s_add_u32 m0, {sGU}, {off + 1024*ii}")
            a(f"global_load_lds_dwordx4 {ga}, {ptr}")
            if i < 3: a(f"v_add_u32 {ga}, {sgn*32*2752}, {ga}")
        a(f"s_mov_b64 exec, -1")
    dm = G.o.get("dma", "0")
    if dm == "0": dma(pWG, 0, 1)
    G.stage_addrs()
    a15 = V.alloc("a15"); g4 = V.alloc("g4")
    tA = V.alloc("tA"); p0 = V.alloc("p0"); p2 = V.alloc("p2"); zw = V.alloc("zw"); tl = V.alloc("tl"); tsel = V.alloc("tsel")
    fA = [V.alloc(f"fA{i}") for i in range(5)]
    zA = V.alloc("zA"); bA = V.alloc("bA"); wA = V.alloc("wA"); exA = V.alloc("exA"); mi = V.alloc("kmi")
    box = [V.alloc("box9", 4), V.alloc("box7", 4)]
    sh = V.alloc("sh", 2)
    a(f"v_and_b32 {a15}, 15, {lane}")
    a(f"v_lshrrev_b32 {g4}, 4, {lane}")
    a(f"s_lshr_b32 {sT[0]}, {sC}, 1")
    a(f"s_mul_i32 {sT[0]}, {sT[0]}, {TABP}")
    a(f"s_and_b32 {sT[1]}, {sC}, 1")
    a(f"s_lshl_b32 {sT[1]}, {sT[1]}, 9")
    a(f"s_add_u32 {sT[0]}, {sT[0]}, {sT[1]}")
    a(f"v_and_b32 {t}, 31, {lane}")
    a(f"v_lshrrev_b32 {t2}, 5, {lane}")
    a(f"v_mul_u32_u24 {tA}, {ROWS}, {t}")
    a(f"v_lshl_add_u32 {tA}, {t2}, 4, {tA}")
    a(f"v_add_u32 {tA}, {sT[0]}, {tA}")
    sPZ = sT[2]
    a(f"s_mul_i32 {sPZ}, {sC}, {PZC}")
    a(f"s_add_u32 {sPZ}, {sPZ}, {PZ}")
    a(f"v_lshlrev_b32 {p0}, 5, {t}")
    a(f"v_lshl_add_u32 {p0}, {t2}, 4, {p0}")
    a(f"v_add_u32 {p0}, {sPZ}, {p0}")
    a(f"v_lshlrev_b32 {p2}, 5, {lane}")
    a(f"v_add_u32 {p2}, {sPZ}, {p2}")
    a(f"v_lshlrev_b32 {zw}, 1, {t}")
    a(f"v_lshl_add_u32 {zw}, {t2}, 8, {zw}")
    a(f"v_add_u32 {zw}, {sPZ}, {zw}")
    a(f"v_add_u32 {tl}, {sPZ}, {l4}")
    a(f"v_lshlrev_b32 {t}, 3, {g4}")
    a(f"v_sub_u32 {t}, {a15}, {t}")
    a(f"s_add_u32 {sT[3]}, {sPZ}, 96")
    a(f"v_lshl_add_u32 {fA[0]}, {t}, 2, {sT[3]}")
    for i in range(1, 5):
        a(f"v_add_u32 {fA[i]}, {1024*i}, {fA[0]}")
    a(f"v_sub_u32 {t2}, 15, {t}")
    for bx, lo in ((box[0], 0x1ff << 23), (box[1], 0x7f << 16)):
        a(f"s_mov_b32 {sT[4]}, {lo:#x}")
        a(f"s_mov_b32 {sT[5]}, 0")
        a(f"v_lshrrev_b64 {sh}, {t2}, {sTP[2]}")
        a(f"v_lshl_or_b32 {sh[1]}, {sh[0]}, 15, 0")
        a(f"v_and_b32 {sh[0]}, 0xff, {sh[0]}")
        a(f"v_lshl_or_b32 {sh[0]}, {sh[0]}, 15, {sh[0]}")
        for i in range(4):
            a(f"v_lshrrev_b32 {bx[i]}, {2*i}, {sh[0]}")
            a(f"v_and_b32 {bx[i]}, 0x10001, {bx[i]}")
            a(f"v_mul_u32_u24 {bx[i]}, 0x3c00, {bx[i]}")
    a(f"v_lshlrev_b32 {t}, 2, {g4}")
    a(f"v_sub_u32 {t}, {a15}, {t}")
    a(f"s_add_u32 {sT[3]}, {sPZ}, {ZOFF + 48}")
    a(f"v_lshl_add_u32 {zA}, {t}, 2, {sT[3]}")
    a(f"s_mul_i32 {sT[3]}, {sC}, {UTC}")
    a(f"v_lshlrev_b32 {t}, 4, {g4}")
    a(f"v_add_u32 {t}, {sT[3]}, {t}")
    a(f"v_lshl_add_u32 {bA}, {a15}, 5, {t}")
    a(f"v_add_u32 {bA}, 32, {bA}")
    a(f"v_xor_b32 {wA}, 3, {a15}")
    a(f"v_lshl_add_u32 {wA}, {wA}, 5, {t}")
    a(f"v_add_u32 {wA}, 456, {wA}")
    a(f"s_lshl_b32 {sT[3]}, {sC}, 10")
    a(f"v_lshlrev_b32 {t}, 4, {g4}")
    a(f"v_lshl_add_u32 {exA}, {a15}, 6, {t}")
    a(f"v_add_u32 {exA}, {sT[3]}, {exA}")
    a(f"v_mov_b32 {mi}, {MISC}")
    a(f"v_mov_b32 {tsel}, 0x0c0c0c0c")
    for n, val in ((13, 0x03020c0c), (12, 0x03020302), (6, 0x01000302), (5, 0x01000100)):
        a(f"s_mov_b64 exec, {(1 << n) - 1:#x}")
        a(f"v_mov_b32 {tsel}, {val:#x}")
    a(f"s_mov_b64 exec, -1")
    V.release("sh")
    pub = G.stats("K")
    def pub2():
        pub()
        if dm == "1": dma(pWG, 0, 1)
        if dm in "01": dma(pWU, 4096, -1)
    G.tab("K", pub2)
    G.dump_lds("tab")
    if dm == "2":
        dma(pWG, 0, 1); dma(pWU, 4096, -1)
    V.release("ga")
    Aall = V.alloc("A", 132)
    A = [Aall[4*s:4*s+4] for s in range(33)]
    D = V.alloc("D", 16)
    for st in range(16):
        a(f"ds_read_b128 {A[2*st]}, {tA} offset:{32*ROWS + 32*st}")
        a(f"ds_read_b128 {A[2*st+1]}, {tA} offset:{32*st}")
    a(f"v_mov_b32 {t}, 1")
    a(f"s_mov_b64 exec, 1")
    a(f"ds_add_u32 {mi}, {t} offset:{M_TABF}")
    a(f"s_mov_b64 exec, -1")
    a(f"v_mov_b32 {t}, 0")
    a(f"s_mov_b64 exec, 0xffff")
    a(f"ds_write_b32 {tl}, {t}")
    a(f"s_mov_b64 exec, -1")
    for st in range(16):
        a(f"v_mfma_f32_32x32x16_f16 {D}, {A[2*st]}, {A[2*st+1]}, {D if st else 0}")
    G.stamp(4)
    w = V.alloc("pw", 20)
    nx = V.alloc("nx")
    a.begin()
    a(f"v_cvt_pk_f16_f32 {w[0]}, {D[4]}, {D[4]}")
    a(f"v_cvt_pk_f16_f32 {w[1]}, {D[4]}, {D[4]}")
    a(f"v_cvt_pk_f16_f32 {w[2]}, {D[5]}, {D[4]}")
    a(f"v_cvt_pk_f16_f32 {w[3]}, {D[5]}, {D[5]}")
    a(f"ds_write_b128 {p0}, {w[0:4]} offset:{64 + 1024}")
    a(f"ds_write_b16 {p0}, {w[0]} offset:{64 + 1024 - 4}")
    a(f"v_cvt_pk_f16_f32 {w[4]}, {D[0]}, 0")
    a(f"v_cvt_pk_f16_f32 {w[5]}, {D[1]}, {D[0]}")
    a(f"v_cvt_pk_f16_f32 {w[6]}, {D[2]}, {D[1]}")
    a(f"v_cvt_pk_f16_f32 {w[7]}, {D[3]}, {D[2]}")
    a(f"ds_write_b128 {p0}, {w[4:8]} offset:64")
    a(f"ds_write_b16 {p0}, {w[7]} offset:{64 + 16 + 2}")
    a(f"v_mov_b32_dpp {nx}, {D[8]} wave_rol:1 row_mask:0xf bank_mask:0xf")
    a(f"v_mov_b32_dpp {nx}, {D[6]} wave_shl:1 row_mask:0xf bank_mask:0xf")
    a(f"v_cvt_pk_f16_f32 {w[8]}, {D[6]}, {D[6]}")
    a(f"v_cvt_pk_f16_f32 {w[9]}, {D[6]}, {D[6]}")
    a(f"v_cvt_pk_f16_f32 {w[10]}, {D[6]}, {D[6]}")
    a(f"v_cvt_pk_f16_f32 {w[11]}, {D[7]}, {D[6]}")
    a(f"v_cvt_pk_f16_f32 {w[12]}, {D[7]}, {D[7]}")
    a(f"v_cvt_pk_f16_f32 {w[13]}, {D[7]}, {D[7]}")
    a(f"v_cvt_pk_f16_f32 {w[14]}, {nx}, {D[7]}")
    a(f"v_cvt_pk_f16_f32 {w[15]}, {nx}, {nx}")
    a(f"ds_write_b128 {p2}, {w[8:12]} offset:{64 + 2048}")
    a(f"ds_write_b128 {p2}, {w[12:16]} offset:{64 + 2048 + 16}")
    a(f"ds_write_b16 {p2}, {w[8]} offset:{64 + 2048 - 4}")
    a(f"v_cvt_pk_f16_f32 {w[16]}, {D[8]}, {D[9]}")
    a(f"v_cvt_pk_f16_f32 {w[17]}, {D[10]}, {D[11]}")
    a(f"v_readlane_b32 {sT[0]}, {w[16]}, 0")
    a(f"v_readlane_b32 {sT[1]}, {w[16]}, 1")
    a(f"s_pack_ll_b32_b16 {sT[0]}, {sT[0]}, {sT[1]}")
    a(f"v_perm_b32 {w[18]}, {sT[0]}, {sT[0]}, {tsel}")
    a(f"ds_write_b32 {tl}, {w[18]} offset:{4*1040}")
    a(f"s_mov_b64 exec, -4")
    a(f"ds_write_b16 {zw}, {w[16]} offset:{ZOFF + 56}")
    a(f"s_mov_b64 exec, 0xffffffff")
    a(f"ds_write_b16_d16_hi {zw}, {w[16]} offset:{ZOFF + 56 + 64}")
    a(f"ds_write_b16 {zw}, {w[17]} offset:{ZOFF + 56 + 128}")
    a(f"ds_write_b16_d16_hi {zw}, {w[17]} offset:{ZOFF + 56 + 192}")
    a(f"s_mov_b64 exec, -1")
    a.end()
    V.release("pw", "nx", "D", "p0", "p2", "zw", "tl", "tsel", "tA")
    for s in range(33):
        o = 32 * (s & 7)
        a(f"ds_read2_b32 {A[s][0:2]}, {fA[s >> 3]} offset0:{o+8} offset1:{o+6}")
        a(f"ds_read2_b32 {A[s][2:4]}, {fA[s >> 3]} offset0:{o+4} offset1:{o+2}")
    G.stamp(5)
    for n in [f"fA{i}" for i in range(5)]:
        V.release(n)
    Zf = [V.alloc(f"Zf{i}", 4) for i in range(4)]
    for d in range(4):
        a(f"ds_read2_b32 {Zf[d][0:2]}, {zA} offset0:{16*d} offset1:{16*d+1}")
        a(f"ds_read2_b32 {Zf[d][2:4]}, {zA} offset0:{16*d+2} offset1:{16*d+3}")
    a("s_waitcnt vmcnt(0) lgkmcnt(0)")
    G.stamp(7)
    a("s_barrier")
    G.dump_lds("ut")
    V.release("zA")
    a(f"s_cmp_eq_u32 {sPART}, 0")
    a(f"s_cbranch_scc0 L_CONV1")
    conv(G, 0, A, Zf, box, bA, wA, exA, mi)
    G.stamp(8)
    a("s_branch L_FIN")
    a.label("L_CONV1")
    conv(G, 1, A, Zf, box, bA, wA, exA, mi)
    G.stamp(8)


def ffn(G, wd, cd, t, a15, g4, mi):
    a, V = G.a, G.V
    lane, l4, l16 = G.lane, G.l4, G.l16
    snap = V.snapshot()
    xs = cd[2:4]; st = cd[4:6]; xr = cd[6]; t2 = cd[7]
    a(f"s_lshl_b32 {sT[1]}, {sC}, 8")
    ta = V.alloc("ta"); Bg = V.alloc("Bg", 32); xa = V.alloc("xa"); xw = V.alloc("xw")
    a(f"v_lshrrev_b32 {ta}, 2, {a15}")
    a(f"v_lshl_add_u32 {ta}, {g4}, 3, {ta}")
    a(f"v_lshlrev_b32 {ta}, 5, {ta}")
    a(f"v_and_b32 {xa}, 3, {lane}")
    a(f"v_lshl_add_u32 {ta}, {xa}, 3, {ta}")
    a(f"s_lshl_b32 {sT[0]}, {sC}, 13")
    a(f"s_add_u32 {sT[0]}, {sT[0]}, {GU}")
    a(f"v_add_u32 {ta}, {sT[0]}, {ta}")
    for m in range(2):
        for s in range(4):
            for hh in range(2):
                r = Bg[16*m + 4*s + 2*hh: 16*m + 4*s + 2*hh + 2]
                a(f"ds_read_b64_tr_b16 {r}, {ta} offset:{4096*m + 1024*s + 128*hh}")
    a(f"s_add_u32 {sT[1]}, {sT[1]}, {MISC + M_XS}")
    a(f"v_add_u32 {xw}, {sT[1]}, {l4}")
    a(f"v_lshlrev_b32 {xa}, 4, {g4}")
    a(f"v_add_u32 {xa}, {sT[1]}, {xa}")
    wp = V.alloc("wp", 16)
    a(f"s_mov_b32 {sT[2]}, 0x05040100")
    a(f"s_mov_b32 {sT[3]}, 0x07060302")
    for i in range(8):
        a(f"v_perm_b32 {wp[i]}, {wd[2*i+1]}, {wd[2*i]}, {sT[2]}")
        a(f"v_perm_b32 {wp[8+i]}, {wd[2*i+1]}, {wd[2*i]}, {sT[3]}")
    fa = V.alloc("fa"); pa = V.alloc("pa")
    a(f"v_lshlrev_b32 {fa}, 4, {a15}")
    a(f"v_add_u32 {fa}, {MISC + M_FP}, {fa}")
    a(f"s_lshl_b32 {sT[2]}, {sC}, 2")
    a(f"v_add_u32 {pa}, {sT[2]}, {fa}")
    oa = V.alloc("oa")
    a(f"v_lshrrev_b32 {oa}, 1, {lane}")
    a(f"s_lshl_b32 {sT[2]}, {sC}, 5")
    a(f"v_add_u32 {oa}, {sT[2]}, {oa}")
    a(f"v_mul_u32_u24 {oa}, {W_FG}, {oa}")
    a(f"v_and_b32 {t}, 16, {l16}")
    a(f"s_lshl_b32 {sT[2]}, {sSIG}, 5")
    a(f"s_add_u32 {sT[2]}, {sT[2]}, {W_FFN}")
    a(f"v_add3_u32 {oa}, {oa}, {t}, {sT[2]}")
    a(f"s_mov_b32 {sSPIN}, {SPIN}")
    a("s_branch L_FS_CHK")
    a.label("L_FS_RETRY")
    a(f"global_load_dwordx2 {st}, {t2}, {pWS} sc1")
    a.label("L_FS_CHK")
    a(f"v_cmp_ne_u32 vcc, {sTAG}, {st[1]}")
    a(f"s_cbranch_vccz L_FS_OK")
    a(f"s_sub_u32 {sSPIN}, {sSPIN}, 1")
    a(f"s_cbranch_scc0 L_FS_RETRY")
    a.label("L_FS_OK")
    a(f"v_and_b32 {st[1]}, 0xffff0000, {st[0]}")
    a(f"v_lshlrev_b32 {st[0]}, 16, {st[0]}")
    a(f"v_rcp_f32 {st[1]}, {st[1]}")
    a(f"v_lshlrev_b32 {xs[0]}, 16, {xr}")
    a(f"v_and_b32 {xs[1]}, 0xffff0000, {xr}")
    a(f"v_pk_add_f32 {xs}, {xs}, {st} op_sel_hi:[1,0]")
    a(f"v_cvt_pk_bf16_f32 {xs[0]}, 0, {xs[0]}")
    a(f"v_cvt_pk_bf16_f32 {xs[1]}, 0, {xs[1]}")
    a(f"v_pk_mul_f32 {xs}, {xs}, {st} op_sel:[0,1] op_sel_hi:[1,1]")
    a(f"v_cvt_pk_bf16_f32 {xr}, {xs[0]}, {xs[1]}")
    a(f"ds_write_b32 {xw}, {xr}")
    Ax = wd; dg = V.alloc("dg", 4); du = V.alloc("du", 4)
    for s in range(4):
        a(f"ds_read_b128 {Ax[4*s:4*s+4]}, {xa} offset:{64*s}")
    for s in range(4):
        a(f"v_mfma_f32_16x16x32_bf16 {dg}, {Ax[4*s:4*s+4]}, {Bg[4*s:4*s+4]}, {dg if s else 0}")
        a(f"v_mfma_f32_16x16x32_bf16 {du}, {Ax[4*s:4*s+4]}, {Bg[16+4*s:20+4*s]}, {du if s else 0}")
    a(f"v_mov_b32 {t}, 1")
    a(f"s_mov_b64 exec, 0xffff")
    a(f"ds_write_b32 {pa}, {dg[0]}")
    a(f"ds_write_b32 {pa}, {du[0]} offset:256")
    a(f"s_mov_b64 exec, 1")
    a(f"ds_add_u32 {mi}, {t} offset:{M_FCNT}")
    a(f"s_mov_b64 exec, -1")
    a(f"s_mov_b32 {sSPIN}, {SPIN}")
    a.label("L_FC")
    a(f"ds_read_b32 {t}, {mi} offset:{M_FCNT}")
    a(f"ds_read_b128 {dg}, {fa}")
    a(f"ds_read_b128 {du}, {fa} offset:256")
    a(f"v_cmp_ne_u32 vcc, 4, {t}")
    a(f"s_cbranch_vccz L_FC_OK")
    a(f"s_sub_u32 {sSPIN}, {sSPIN}, 1")
    a(f"s_cbranch_scc0 L_FC")
    a.label("L_FC_OK")
    a(f"v_pk_add_f32 {dg[0:2]}, {dg[0:2]}, {dg[2:4]}")
    a(f"v_pk_add_f32 {du[0:2]}, {du[0:2]}, {du[2:4]}")
    a(f"v_add_f32 {dg[0]}, {dg[0]}, {dg[1]}")
    a(f"v_add_f32 {du[0]}, {du[0]}, {du[1]}")
    a(f"v_cvt_pk_bf16_f32 {dg[0]}, 0, {dg[0]}")
    a(f"v_cvt_pk_bf16_f32 {du[0]}, 0, {du[0]}")
    a(f"v_mul_f32 {dg[1]}, {LOG2E | 0x80000000:#x}, {dg[0]}")
    a(f"v_exp_f32 {dg[1]}, {dg[1]}")
    a(f"v_add_f32 {dg[1]}, 1.0, {dg[1]}")
    a(f"v_rcp_f32 {dg[1]}, {dg[1]}")
    a(f"v_mul_f32 {dg[0]}, {dg[0]}, {dg[1]}")
    a(f"v_cvt_pk_bf16_f32 {dg[0]}, 0, {dg[0]}")
    a(f"v_mul_f32 {dg[0]}, {dg[0]}, {du[0]}")
    a(f"v_mov_b32_dpp {dg[1]}, {dg[0]} quad_perm:[1,0,3,2] row_mask:0xf bank_mask:0xf")
    a(f"v_cvt_pk_bf16_f32 {dg[0]}, {dg[0]}, {dg[1]}")
    for i in range(8):
        a(f"v_readlane_b32 {sT[i]}, {dg[0]}, {2*i}")
    y = Ax[0:4]
    a(f"v_mov_b32 {y[1]}, {sTAG}")
    a(f"v_mov_b32 {y[3]}, {sTAG}")
    for i in range(8):
        a(f"v_dot2_f32_bf16 {y[0]}, {wp[i]}, {sT[i]}, {y[0] if i else 0}")
        a(f"v_dot2_f32_bf16 {y[2]}, {wp[8+i]}, {sT[i]}, {y[2] if i else 0}")
    a(f"global_store_dwordx4 {oa}, {y}, {pWS} sc1")
    V.restore(snap)
```

```python
import sys, os
sys.path.insert(0, os.path.dirname(__file__))
from asmlib import Asm, Regs, Reg

NAME = "recurrent_scan__ssm_conv_s4d__moe_arch_mod__prompt"
REF = f"cdna_kernels/{NAME}.s.ref"

TABP, ROWS = 55120, 1040
UTC = 4608
EX = 18432
PZ, PZC, ZOFF = 110240, 4672, 4288
GU = 128928
MISC = 161696
M_KEY, M_CNT, M_TABF, M_EXC, M_FCNT, M_INV = 0, 8, 12, 16, 40, 48
M_FP = 64
M_XS = 576
LDS = 163840
assert MISC + M_XS + 1024 <= LDS
W_CST, W_CAND, W_FFN, W_FG = 16384, 20480, 24576, 3072
W_T = 4 << 20
STG = PZ
TM = 0x00070007
W_DUMP = 128 << 20
W_TS = 64 << 20
SPIN = 1 << 16
LOG2E = 0x3fb8aa3b
INV2PI = 0x3e22f983

S = lambda a, n=1: Reg("s", a, n)
pU, pLA, pAI, pCR, pCI, pLDT, pDSK = S(4, 2), S(6, 2), S(8, 2), S(10, 2), S(12, 2), S(14, 2), S(16, 2)
pWR, pWG, pWU, pWD, pOUT, pDBG, pWS = S(20, 2), S(22, 2), S(24, 2), S(26, 2), S(28, 2), S(30, 2), S(32, 2)
sLDT, sDSK = S(34, 2), S(36, 2)
sE, sTAG, sW, sC, sG, sPART, sJ = S(38), S(39), S(40), S(41), S(42), S(43), S(44)
sSEL, sROWK, sSIG, sFFN = S(45), S(46), S(47), S(48, 2)
sT = [S(50 + i) for i in range(10)]
sTP = [S(50 + 2 * i, 2) for i in range(5)]
sIDX, sRB, sSPIN = S(60), S(61), S(62)
sD = S(64, 4)
sDT = S(68, 2)
sTS = S(72, 24)
sX = [S(96 + i) for i in range(4)]

OWN = {0: [0, 3, 4, 7], 1: [1, 2, 5, 6]}


class Gen:
    def __init__(self, dump=None, ts=False, opts=None):
        self.a = Asm()
        self.dump = dump
        self.ts = ts
        self.o = opts or {}
        self.V = Regs("v", 1, 256)
        self.nts = 0

    def stamp(self, i, pin=False):
        if self.ts:
            self.a(f"{'s_memtime' if self.o.get('cyc') else 's_memrealtime'} {sTS[2*i:2*i+2]}").pin = pin

    def reduce(self, v, op="v_add_f32"):
        a = self.a
        for m in ("row_shr:1 row_mask:0xf", "row_shr:2 row_mask:0xf", "row_shr:4 row_mask:0xf", "row_shr:8 row_mask:0xf",
                  "row_bcast:15 row_mask:0xa", "row_bcast:31 row_mask:0xc"):
            a(f"{op}_dpp {v}, {v}, {v} {m} bank_mask:0xf")

    def cmul(self, r, x, y):
        a = self.a
        a(f"v_pk_mul_f32 {r}, {x}, {y} op_sel_hi:[1,0]")
        a(f"v_pk_fma_f32 {r}, {x}, {y}, {r} op_sel:[1,1,0] op_sel_hi:[0,1,1] neg_lo:[1,0,0]")

    def spin_begin(self, name):
        a = self.a
        a(f"s_mov_b32 {sSPIN}, {SPIN}")
        a.label(name)

    def spin_end(self, name):
        a = self.a
        done = name + "_d"
        a(f"s_cbranch_scc1 {done}")
        a(f"s_sub_u32 {sSPIN}, {sSPIN}, 1")
        a(f"s_cbranch_scc0 {name}")
        a.label(done)

    def prologue(self):
        a, V = self.a, self.V
        self.stamp(0)
        a("s_cmp_ge_u32 s2, 0x100")
        a("s_cbranch_scc1 L_EXIT")
        a("s_load_dwordx16 s[4:19], s[0:1], 0")
        a("s_load_dwordx2 s[32:33], s[0:1], 112")
        a("s_load_dwordx8 s[20:27], s[0:1], 64")
        a("s_load_dwordx4 s[28:31], s[0:1], 96")
        self.lane = lane = V.alloc("lane")
        self.l4 = l4 = V.alloc("l4")
        self.l16 = l16 = V.alloc("l16")
        t0 = V.alloc("t0"); t1 = V.alloc("t1")
        self.x = x = V.alloc("x", 4); self.wr = wr = V.alloc("wr", 4); self.par = par = V.alloc("par", 4)
        self.prefetch_code()
        a(f"v_lshrrev_b32 {t0}, 6, v0")
        a(f"v_and_b32 {lane}, 63, v0")
        a(f"v_readfirstlane_b32 {sW}, {t0}")
        a(f"s_lshr_b32 {sJ}, s2, 3")
        a(f"s_and_b32 {sG}, s2, 7")
        a(f"s_lshl_b32 {sG}, {sG}, 4")
        a(f"s_lshr_b32 {sT[0]}, {sJ}, 1")
        a(f"s_add_u32 {sG}, {sG}, {sT[0]}")
        a(f"s_and_b32 {sPART}, {sJ}, 1")
        a(f"s_lshr_b32 {sT[1]}, s2, 2")
        a(f"s_lshl_b32 {sT[1]}, {sT[1]}, 3")
        a(f"s_add_u32 {sT[1]}, {sT[1]}, {sW}")
        a(f"s_lshl_b32 {sT[1]}, {sT[1]}, 2")
        a(f"s_and_b32 {sT[4]}, s2, 3")
        a(f"s_add_u32 {sT[1]}, {sT[1]}, {sT[4]}")
        a(f"s_sub_u32 {sROWK}, 0x7ff, {sT[1]}")
        a(f"s_lshl_b32 {sT[1]}, {sT[1]}, 10")
        a(f"v_lshlrev_b32 {l16}, 4, {lane}")
        a(f"v_add_u32 {t0}, {sT[1]}, {l16}")
        a(f"v_lshlrev_b32 {l4}, 2, {lane}")
        a(f"s_and_b32 {sC}, {sW}, 3")
        a(f"s_lshl_b32 {sT[2]}, {sG}, 2")
        a(f"s_add_u32 {sT[2]}, {sT[2]}, {sC}")
        a(f"s_lshl_b32 {sT[2]}, {sT[2]}, 8")
        a(f"v_add_u32 {t1}, {sT[2]}, {l4}")
        a(f"s_lshl_b32 {sT[3]}, {sG}, 3")
        a("s_waitcnt lgkmcnt(0)")
        a(f"global_load_dwordx4 {x}, {t0}, {pU}")
        a(f"s_load_dword {sE}, {pWS}, 0")
        a(f"s_load_dwordx2 {sLDT}, {pLDT}, {sT[3]}")
        a(f"s_load_dwordx2 {sDSK}, {pDSK}, {sT[3]}")
        a(f"global_load_dwordx4 {wr}, {l16}, {pWR}")
        for i, p in enumerate((pLA, pAI, pCR, pCI)):
            a(f"global_load_dword {par[i]}, {t1}, {p}")
        if self.o.get("ts9"): self.stamp(9)
        a(f"s_lshr_b32 {sT[0]}, {sJ}, 1")
        a(f"s_lshr_b32 {sT[1]}, {sT[0]}, 2")
        a(f"s_lshl_b32 {sT[1]}, {sT[1]}, 3")
        a(f"s_and_b32 {sT[2]}, s2, 7")
        a(f"s_add_u32 {sT[1]}, {sT[1]}, {sT[2]}")
        a(f"s_lshl_b32 {sT[1]}, {sT[1]}, 2")
        a(f"s_and_b32 {sT[0]}, {sT[0]}, 3")
        a(f"s_add_u32 {sSIG}, {sT[1]}, {sT[0]}")
        a(f"s_cmp_eq_u32 {sPART}, 1")
        a(f"s_cselect_b32 {sSIG}, {sSIG}, 127")
        a(f"s_cmp_lt_u32 {sSIG}, 86")
        a(f"s_cselect_b64 {sFFN}, -1, 0")
        a(f"s_cselect_b32 {sSIG}, {sSIG}, 0")
        V.release("t0", "t1")
        a(f"s_cmp_lt_u32 {sW}, 4")
        a("s_cbranch_scc0 L_KROLE")

    def stage_addrs(self):
        a, V = self.a, self.V
        lane = self.lane
        t0 = V.alloc("t0"); t1 = V.alloc("t1")
        self.sw = sw = V.alloc("sw"); self.sr = sr = V.alloc("sr"); self.ta = ta = V.alloc("ta0"); self.tb = tb = V.alloc("tb0")
        a(f"v_bfe_u32 {t0}, {lane}, 1, 3")
        a(f"v_xor_b32 {t0}, {sW}, {t0}")
        a(f"v_lshlrev_b32 {sw}, 7, {lane}")
        a(f"v_lshl_add_u32 {sw}, {t0}, 4, {sw}")
        a(f"v_and_b32 {t0}, 7, {lane}")
        a(f"v_lshrrev_b32 {t1}, 3, v0")
        a(f"v_lshlrev_b32 {ta}, 16, {t1}")
        a(f"v_lshl_add_u32 {ta}, {t0}, 4, {ta}")
        a(f"s_lshr_b32 {sT[0]}, s2, 5")
        a(f"s_lshl_b32 {sT[0]}, {sT[0]}, 12")
        a(f"s_and_b32 {sT[1]}, s2, 3")
        a(f"s_lshl_b32 {sT[1]}, {sT[1]}, 10")
        a(f"s_add_u32 {sT[0]}, {sT[0]}, {sT[1]}")
        a(f"s_and_b32 {sT[1]}, s2, 28")
        a(f"s_lshl_b32 {sT[1]}, {sT[1]}, 5")
        a(f"s_add_u32 {sT[0]}, {sT[0]}, {sT[1]}")
        a(f"s_add_u32 {sT[0]}, {sT[0]}, {W_T}")
        a(f"v_add_u32 {ta}, {sT[0]}, {ta}")
        a(f"v_add_u32 {tb}, 0x8000, {ta}")
        a(f"v_lshlrev_b32 {sr}, 7, {t1}")
        a(f"v_bfe_u32 {t1}, {t1}, 1, 3")
        a(f"v_xor_b32 {t1}, {t1}, {t0}")
        a(f"v_lshl_add_u32 {sr}, {t1}, 4, {sr}")
        self.sw2 = sw2 = V.alloc("sw2")
        a(f"v_add_u32 {sw2}, {STG + 8}, {sw}")
        a(f"v_add_u32 {sw}, {STG}, {sw}")
        a(f"v_add_u32 {sr}, {STG}, {sr}")
        V.release("t0", "t1")

    def prefetch_code(self):
        a, V = self.a, self.V
        t = V.alloc("pf")
        a(f"s_getpc_b64 {sTP[0]}")
        a.label(lab := a.newlabel("L_PC"))
        a(f"s_sub_u32 {sTP[0][0]}, {sTP[0][0]}, {lab}-L_BEGIN")
        a(f"s_subb_u32 {sTP[0][1]}, {sTP[0][1]}, 0")
        a(f"v_lshlrev_b32 {t}, 6, v0")
        a(f"v_min_u32 {t}, L_END-L_BEGIN-4, {t}")
        a(f"global_load_dword {t}, {t}, {sTP[0]}")

    def stats(self, role):
        a, V = self.a, self.V
        x, wr = self.x, self.wr
        acc = V.alloc("acc"); xf = V.alloc("xf", 8); mean = V.alloc("mean"); negm = V.alloc("negm")
        s2 = V.alloc("s2", 2); pk = V.alloc("pk", 4); ad = V.alloc("ad"); t = V.alloc("st"); wf = V.alloc("wf", 8)
        msk = V.alloc("msk"); kk = V.alloc("kk", 2); mi = V.alloc("smi")
        one = sT[0]
        sT0, sT1 = sX[2], sX[3]
        a(f"s_mul_i32 {sTAG}, {sE}, 0x9E3779B1")
        a(f"s_add_u32 {sTAG}, {sTAG}, 0x7F4A7C15")
        a(f"s_mov_b32 {sT[2]}, {sTAG}")
        a(f"s_mov_b32 {sT[3]}, {sTAG}")
        a(f"s_mul_i32 {sT[1]}, {sW}, 3")
        a(f"s_lshr_b64 {sTP[1]}, {sTP[1]}, {sT[1]}")
        a(f"s_and_b32 {sT0}, {sT[2]}, {TM:#x}")
        a(f"s_lshr_b32 {sT[2]}, {sT[2]}, 8")
        a(f"s_and_b32 {sT1}, {sT[2]}, {TM:#x}")
        a(f"s_mov_b32 {one}, 0x3f803f80")
        a(f"v_mov_b32 {msk}, {TM ^ 0xffffffff:#x}")
        a(f"v_mov_b32 {pk[1]}, {sTAG}")
        a(f"v_mov_b32 {pk[3]}, {sTAG}")
        a(f"v_mov_b32 {mi}, {MISC}")
        a(f"s_lshl_b32 {sT[1]}, s2, 3")
        a(f"s_add_u32 {sT[1]}, {sT[1]}, {W_CAND}")
        a(f"v_mov_b32 {ad}, {sT[1]}")
        G0 = V.alloc("G0", 4); G1 = V.alloc("G1", 4)
        a.begin()
        a(f"ds_write2st64_b64 {self.sw}, {x[0:2]}, {x[2:4]} offset1:16")
        a(f"v_dot2_f32_bf16 {acc}, {x[0]}, {one}, 0")
        for i in range(1, 4):
            a(f"v_dot2_f32_bf16 {acc}, {x[i]}, {one}, {acc}")
        self.stamp(1)
        self.reduce(acc)
        a(f"v_mul_f32 {mean}, 0x3b000000, {acc}")
        a(f"v_cvt_pk_bf16_f32 {negm}, 0, -{mean}")
        a(f"v_readlane_b32 {sT[2]}, {negm}, 63")
        for i in range(4):
            a(f"v_lshlrev_b32 {xf[2*i]}, 16, {x[i]}")
            a(f"v_and_b32 {xf[2*i+1]}, 0xffff0000, {x[i]}")
        a(f"v_add_f32 {mean}, {mean}, {negm}")
        for i in range(4):
            a(f"v_pk_add_f32 {xf[2*i:2*i+2]}, {xf[2*i:2*i+2]}, {sTP[1]} op_sel_hi:[1,0]")
        a(f"v_pk_mul_f32 {s2}, {xf[0:2]}, {xf[0:2]}")
        for i in range(1, 4):
            a(f"v_pk_fma_f32 {s2}, {xf[2*i:2*i+2]}, {xf[2*i:2*i+2]}, {s2}")
        a(f"v_add_f32 {acc}, {s2[0]}, {s2[1]}")
        self.reduce(acc)
        a(f"v_mul_f32 {acc}, 0x3b000000, {acc}")
        a(f"v_fma_f32 {acc}, -{mean}, {mean}, {acc}")
        a(f"v_max_f32 {acc}, 0, {acc}")
        a(f"v_cvt_pk_bf16_f32 {acc}, 0, {acc}")
        a(f"v_add_f32 {acc}, 0x3727c5ac, {acc}")
        a(f"v_cvt_pk_bf16_f32 {acc}, 0, {acc}")
        a(f"v_sqrt_f32 {acc}, {acc}")
        a(f"v_cvt_pk_bf16_f32 {t}, 0, {acc}")
        a(f"v_rcp_f32 {t}, {t}")
        a(f"v_cvt_pk_bf16_f32 {kk[0]}, {negm}, {acc}")
        for i in range(8):
            a(f"v_cvt_pk_bf16_f32 {xf[i]}, 0, {xf[i]}")
        a(f"v_readlane_b32 {sT[4]}, {t}, 63")
        for i in range(4):
            a(f"v_pk_mul_f32 {xf[2*i:2*i+2]}, {xf[2*i:2*i+2]}, {sTP[2]} op_sel_hi:[1,0]")
        for i in range(8):
            a(f"v_cvt_pk_bf16_f32 {xf[i]}, 0, {xf[i]}")
        for i in range(4):
            a(f"v_cvt_pk_f16_f32 {x[i]}, {xf[2*i]}, {xf[2*i+1]}")
            a(f"v_and_or_b32 {x[i]}, {x[i]}, {msk}, {sT1 if i & 1 else sT0}")
        a(f"ds_write2st64_b64 {self.sw2}, {x[0:2]}, {x[2:4]} offset1:16")
        a("s_waitcnt lgkmcnt(0)")
        a("s_barrier")
        a(f"ds_read_b128 {G0}, {self.sr}")
        a(f"ds_read_b128 {G1}, {self.sr} offset:8192")
        for i in range(4):
            a(f"v_lshlrev_b32 {wf[2*i]}, 16, {wr[i]}")
            a(f"v_and_b32 {wf[2*i+1]}, 0xffff0000, {wr[i]}")
        if self.o.get("kst") and role == "K": self.stamp(6, True)
        a(f"global_store_dwordx4 {self.ta}, {G0}, {pWS} sc1")
        if self.o.get("kst") and role == "K": self.stamp(9, True)
        a(f"global_store_dwordx4 {self.tb}, {G1}, {pWS} sc1")
        if self.o.get("kst") and role == "K": self.stamp(10, True)
        a(f"v_pk_mul_f32 {s2}, {xf[0:2]}, {wf[0:2]}")
        for i in range(1, 4):
            a(f"v_pk_fma_f32 {s2}, {xf[2*i:2*i+2]}, {wf[2*i:2*i+2]}, {s2}")
        a(f"v_add_f32 {acc}, {s2[0]}, {s2[1]}")
        self.reduce(acc)
        a(f"v_cvt_pk_bf16_f32 {acc}, 0, {acc}")
        a(f"v_ashrrev_i32 {t}, 31, {acc}")
        a(f"v_or_b32 {t}, 0x80000000, {t}")
        a(f"v_xor_b32 {t}, {t}, {acc}")
        a(f"v_and_b32 {t}, 0xffff0000, {t}")
        a(f"v_or_b32 {kk[1]}, {sROWK}, {t}")
        a(f"v_mov_b32 {negm}, 1")
        a(f"s_mov_b32 exec_lo, 0")
        a(f"s_mov_b32 exec_hi, 0x80000000")
        a(f"ds_max_u64 {mi}, {kk} offset:{M_KEY}")
        a(f"ds_add_rtn_u32 {negm}, {mi}, {negm} offset:{M_CNT}")
        a(f"ds_read_b32 {pk[0]}, {mi} offset:{M_KEY + 4}")
        a(f"ds_read_b32 {pk[2]}, {mi} offset:{M_KEY}")
        a(f"s_mov_b64 exec, -1")
        a.end()
        self.stamp(2)
        def publish():
            a(f"v_readlane_b32 {sT[0]}, {negm}, 63")
            a(f"s_cmp_eq_u32 {sT[0]}, 7")
            a(f"s_cselect_b32 exec_hi, 0x80000000, 0")
            a(f"s_mov_b32 exec_lo, 0")
            a(f"global_store_dwordx2 {ad}, {pk[0:2]}, {pWS} sc1")
            a(f"global_store_dwordx2 {ad}, {pk[2:4]}, {pWS} offset:{W_CST - W_CAND} sc1")
            a(f"s_mov_b64 exec, -1")
            V.release("negm", "pk", "ad")
        V.release("acc", "xf", "mean", "s2", "st", "x", "wr", "G0", "G1", "sw", "sw2", "sr", "ta0", "tb0", "wf", "msk", "kk", "smi")
        return publish

    def tab(self, role, publish):
        a, V = self.a, self.V
        par = self.par
        h = 0 if role == "U" else 1
        sel = sT[8]
        la = V.alloc("la"); C = V.alloc("C", 2); dt = V.alloc("dt", 2); mx = V.alloc("mx"); t = V.alloc("tt")
        aa = la; bb = V.alloc("bb")
        e1 = V.alloc("e1", 2); e8 = V.alloc("e8", 2); e256 = V.alloc("e256", 2); F2 = V.alloc("F2", 2)
        ad = V.alloc("tad")
        cv = [V.alloc(f"cv{i}") for i in range(6)]
        ncv = [0]
        def put(row, r, g):
            c = cv[ncv[0] % 6]; ncv[0] += 1
            if g:
                a(f"v_cvt_pk_f16_f32 {c}, {r[0]}, -{r[1]}")
            else:
                a(f"v_cvt_pk_f16_f32 {c}, {r[0]}, {r[1]}")
            a(f"ds_write_b32 {ad}, {c} offset:{row*ROWS}")
        a.begin()
        a(f"s_lshl_b32 {sT[9]}, {sC}, 4")
        a(f"s_lshr_b64 {sTP[1]}, {sLDT}, {sT[9]}")
        a(f"s_lshl_b32 {sT[2]}, {sT[2]}, 16")
        a(f"v_mov_b32 {dt[0]}, {sT[2]}")
        a(f"v_mul_f32 {dt[0]}, {LOG2E:#x}, {dt[0]}")
        a(f"v_exp_f32 {dt[0]}, {dt[0]}")
        if h == 0:
            a(f"v_lshlrev_b32 {la}, 16, {par[0]}")
            a(f"v_lshlrev_b32 {bb}, 16, {par[1]}")
            a(f"v_lshlrev_b32 {C[0]}, 16, {par[2]}")
            a(f"v_lshlrev_b32 {C[1]}, 16, {par[3]}")
        else:
            a(f"v_and_b32 {la}, 0xffff0000, {par[0]}")
            a(f"v_and_b32 {bb}, 0xffff0000, {par[1]}")
            a(f"v_and_b32 {C[0]}, 0xffff0000, {par[2]}")
            a(f"v_and_b32 {C[1]}, 0xffff0000, {par[3]}")
        a(f"v_mul_f32 {la}, {LOG2E:#x}, {la}")
        a(f"v_exp_f32 {la}, {la}")
        a(f"v_cvt_pk_bf16_f32 {dt[0]}, 0, {dt[0]}")
        a(f"v_cvt_pk_bf16_f32 {la}, 0, {la}")
        a.end()
        publish()
        a.begin()
        a(f"s_lshr_b32 {sT[0]}, {sC}, 1")
        a(f"s_mul_i32 {sT[0]}, {sT[0]}, {TABP}")
        a(f"s_and_b32 {sT[1]}, {sC}, 1")
        a(f"s_lshl_b32 {sT[1]}, {sT[1]}, 9")
        a(f"s_add_u32 {sT[0]}, {sT[0]}, {sT[1]}")
        if h: a(f"s_add_u32 {sT[0]}, {sT[0]}, 256")
        a(f"v_add_u32 {ad}, {sT[0]}, {self.l4}")
        a(f"v_mul_f32 {aa}, {la}, {dt[0]}")
        a(f"v_mul_f32 {aa}, {LOG2E | 0x80000000:#x}, {aa}")
        a(f"v_mul_f32 {bb}, {bb}, {dt[0]}")
        a(f"v_mul_f32 {bb}, {INV2PI:#x}, {bb}")
        a(f"v_and_b32 {par[2]}, 0x7fff7fff, {par[2]}")
        a(f"v_and_b32 {par[3]}, 0x7fff7fff, {par[3]}")
        a(f"v_pk_max_u16 {mx}, {par[2]}, {par[3]}")
        a(f"v_lshlrev_b32 {t}, 16, {mx}")
        a(f"v_max_u32 {mx}, {mx}, {t}")
        def base(e, k):
            tm = par[0]; tf = par[1]
            if k == 1:
                a(f"v_exp_f32 {tm}, {aa}")
                a(f"v_fract_f32 {tf}, {bb}")
            else:
                lit = {8: "0x41000000", 256: "0x43800000"}[k]
                a(f"v_mul_f32 {tm}, {lit}, {aa}")
                a(f"v_mul_f32 {tf}, {lit}, {bb}")
                a(f"v_exp_f32 {tm}, {tm}")
                a(f"v_fract_f32 {tf}, {tf}")
            a(f"v_cos_f32 {e[0]}, {tf}")
            a(f"v_sin_f32 {e[1]}, {tf}")
            a(f"v_pk_mul_f32 {e}, {e}, {par[0:2]} op_sel_hi:[1,0]")
        base(e8, 8)
        self.reduce(mx, "v_max_u32")
        a(f"v_and_b32 {mx}, 0xffff0000, {mx}")
        a(f"v_mul_f32 {mx}, {mx}, {dt[0]}")
        a(f"v_readlane_b32 {sT[2]}, {mx}, 63")
        a(f"s_lshr_b32 {sT[2]}, {sT[2]}, 23")
        a(f"s_max_u32 {sT[2]}, {sT[2]}, 10")
        a(f"s_min_u32 {sT[2]}, {sT[2]}, 254")
        a(f"s_sub_u32 {sT[4]}, 261, {sT[2]}")
        a(f"s_lshl_b32 {sT[4]}, {sT[4]}, 23")
        a(f"s_sub_u32 {sT[6]}, {sT[2]}, 6")
        a(f"s_lshl_b32 {sT[6]}, {sT[6]}, 23")
        a(f"v_pk_mul_f32 {C}, {C}, {dt} op_sel_hi:[1,0]")
        base(e1, 1)
        base(e256, 256)
        a(f"v_mov_b32 {t}, 0x3c00")
        a(f"ds_write_b32 {ad}, {t}")
        put(1, e8, False)
        self.cmul(F2, e8, e8)
        put(2, F2, False)
        Fa = [V.alloc(f"Fa{i}", 2) for i in range(2)]; Fb = [V.alloc(f"Fb{i}", 2) for i in range(2)]
        pe, po = F2, e8
        G = [C] + [V.alloc(f"G{i}", 2) for i in range(1, 8)]
        H = [V.alloc(f"H{i}", 2) for i in range(4)]
        def gsteps():
            a(f"v_pk_mul_f32 {C}, {C}, {sTP[2]} op_sel_hi:[1,0]"); put(32, C, True); yield
            for i in range(1, 8):
                self.cmul(G[i], G[i-1], e1); put(32 + i, G[i], True); yield
            self.cmul(H[0], G[0], e256); put(40, H[0], True); yield
            self.cmul(H[1], G[4], e256); put(44, H[1], True); yield
            self.cmul(H[2], G[2], e256); put(41, H[2], True); yield
            self.cmul(H[3], G[6], e256); put(45, H[3], True); yield
            self.cmul(G[1], H[0], e256); put(42, G[1], True); yield
            self.cmul(G[3], H[1], e256); put(43, G[3], True); yield
            self.cmul(G[5], G[1], e256); put(46, G[5], True); yield
            self.cmul(G[7], G[3], e256); put(47, G[7], True); yield
            p = G[5]
            for i, q in enumerate((H[0], H[1], H[2], H[3], G[2])):
                self.cmul(q, p, e256); put(48 + i, q, True); p = q; yield
        gs = gsteps()
        for k in range(3, 32):
            if k & 1:
                r = Fb[(k >> 1) & 1]; self.cmul(r, po, F2); po = r
            else:
                r = Fa[(k >> 1) & 1]; self.cmul(r, pe, F2); pe = r
            put(k, r, False)
            if k >= 9: next(gs, None)
        for _ in gs: pass
        if role == "K":
            a(f"s_lshl_b32 {sT[0]}, {sC}, 2")
            a(f"s_add_u32 {sT[0]}, {sT[0]}, {MISC + M_INV}")
            a(f"v_mov_b32 {t}, {sT[0]}")
            a(f"v_mov_b32 {mx}, {sT[6]}")
            a(f"ds_write_b32 {t}, {mx}")
        a.end()
        for n in ["la", "C", "dt", "mx", "tt", "bb", "e1", "e8", "e256", "F2", "tad", "par"] + [f"cv{i}" for i in range(6)] + \
                 [f"Fa{i}" for i in range(2)] + [f"Fb{i}" for i in range(2)] + [f"G{i}" for i in range(1, 8)] + [f"H{i}" for i in range(4)]:
            V.release(n)
        a("s_waitcnt lgkmcnt(0)")
        self.stamp(3)
        a("s_barrier")

    def dump_lds(self, tag):
        if self.dump == tag:
            self.a("s_branch L_DUMP")
            self.a.label(self.a.newlabel("L_dead"))

    def emit_dump(self):
        a = self.a
        a.label("L_DUMP")
        a("s_mov_b64 exec, -1")
        a("s_waitcnt vmcnt(0) lgkmcnt(0)")
        a("s_barrier")
        a("v_lshlrev_b32 v1, 4, v0")
        a(f"s_mul_i32 s50, s2, {LDS}")
        a(f"s_add_u32 s50, s50, {W_DUMP}")
        a("v_add_u32 v2, s50, v1")
        for i in range(20):
            a("ds_read_b128 v[4:7], v1")
            a("global_store_dwordx4 v2, v[4:7], s[32:33]")
            a("v_add_u32 v1, 0x2000, v1")
            a("v_add_u32 v2, 0x2000, v2")
        a("s_branch L_FIN")

    def finish(self):
        a = self.a
        a.label("L_FIN")
        if self.ts:
            self.stamp(11)
            a("s_mov_b64 exec, -1")
            a("s_waitcnt lgkmcnt(0)")
            a("v_mov_b32 v1, 0")
            for i in range(12):
                a(f"v_writelane_b32 v1, {sTS[2*i]}, {i}")
            a(f"s_lshl_b32 s50, s2, 3")
            a(f"s_add_u32 s50, s50, {sW}")
            a(f"s_lshl_b32 s50, s50, 6")
            a(f"s_add_u32 s50, s50, {W_TS}")
            a("v_and_b32 v2, 63, v0")
            a("v_lshlrev_b32 v2, 2, v2")
            a("v_add_u32 v2, s50, v2")
            a("s_mov_b64 exec, 0xffff")
            a("global_store_dword v2, v1, s[32:33]")
            if self.o.get("dbg"):
                a(f"s_not_b32 s50, {sTS[0]}")
                a("v_writelane_b32 v1, s50, 12")
                a("v_and_b32 v2, 63, v0")
                a("v_lshlrev_b32 v2, 2, v2")
                a(f"s_cmp_lt_u32 {sW}, 4")
                a(f"s_cselect_b64 exec, {'0xffff, 0' if self.o['dbg'] == 'U' else '0, 0xffff'}")
                a("global_atomic_umax v2, v1, s[30:31]")
        a.label("L_EXIT")
        a("s_endpgm")
        a.label("L_END")

    def build(self):
        from gen_roles import urole, krole
        a = self.a
        a.label("L_BEGIN")
        self.prologue()
        snap = self.V.snapshot()
        urole(self)
        a("s_branch L_FIN")
        self.V.restore(snap)
        a.label("L_KROLE")
        krole(self)
        if self.dump:
            a("s_branch L_FIN")
            self.emit_dump()
        self.finish()
        body = a.text()
        ref = open(REF).read()
        head = ref[:ref.index(f"{NAME}_kernel:") + len(f"{NAME}_kernel:")]
        head = head.replace("; @launch grid=(4096,1,1) block=(256,1,1) lds=0", f"; @launch grid=(256,1,1) block=(512,1,1) lds={LDS}")
        foot = ref[ref.index('.section .rodata,"a"'):]
        nv = (self.V.high + 3) // 4 * 4
        foot = foot.replace(".amdhsa_next_free_vgpr 256", f".amdhsa_next_free_vgpr {nv}").replace(".amdhsa_accum_offset 256", f".amdhsa_accum_offset {nv}")
        return head + "\n" + body + "\n" + foot


if __name__ == "__main__":
    import argparse
    p = argparse.ArgumentParser()
    p.add_argument("-o", default=f"cdna_kernels/{NAME}.s")
    p.add_argument("--dump", default=None)
    p.add_argument("--ts", action="store_true")
    p.add_argument("--opt", action="append", default=[])
    g = p.parse_args()
    opts = dict((o.split("=") + ["1"])[:2] for o in g.opt)
    gen = Gen(g.dump, g.ts, opts)
    txt = gen.build()
    open(g.o, "w").write(txt)
    print("written", g.o, "vgprs", gen.V.high, "lines", txt.count("\n"))
```

```python
import sys, os
sys.path.insert(0, os.path.dirname(__file__))
from asmlib import Asm, Regs, Reg

NAME = "recurrent_scan__ssm_conv_s4d__moe_arch_mod__prompt"
REF = f"cdna_kernels/{NAME}.s.ref"

TABP, ROWS = 55120, 1040
UTC = 4608
EX = 18432
PZ, PZC, ZOFF = 110240, 4672, 4288
GU = 128928
MISC = 161696
M_KEY, M_CNT, M_TABF, M_EXC, M_FCNT, M_INV = 0, 8, 12, 16, 40, 48
M_FP = 64
M_XS = 576
LDS = 163840
assert MISC + M_XS + 1024 <= LDS
W_CST, W_CAND, W_FFN, W_FG = 16384, 20480, 24576, 3072
W_T = 4 << 20
STG = PZ
TM = 0x00070007
W_DUMP = 128 << 20
W_TS = 64 << 20
SPIN = 1 << 16
LOG2E = 0x3fb8aa3b
INV2PI = 0x3e22f983

S = lambda a, n=1: Reg("s", a, n)
pU, pLA, pAI, pCR, pCI, pLDT, pDSK = S(4, 2), S(6, 2), S(8, 2), S(10, 2), S(12, 2), S(14, 2), S(16, 2)
pWR, pWG, pWU, pWD, pOUT, pDBG, pWS = S(20, 2), S(22, 2), S(24, 2), S(26, 2), S(28, 2), S(30, 2), S(32, 2)
sLDT, sDSK = S(34, 2), S(36, 2)
sE, sTAG, sW, sC, sG, sPART, sJ = S(38), S(39), S(40), S(41), S(42), S(43), S(44)
sSEL, sROWK, sSIG, sFFN = S(45), S(46), S(47), S(48, 2)
sT = [S(50 + i) for i in range(10)]
sTP = [S(50 + 2 * i, 2) for i in range(5)]
sIDX, sRB, sSPIN = S(60), S(61), S(62)
sD = S(64, 4)
sDT = S(68, 2)
sTS = S(72, 24)
sX = [S(96 + i) for i in range(4)]

OWN = {0: [0, 3, 4, 7], 1: [1, 2, 5, 6]}


class Gen:
    def __init__(self, dump=None, ts=False, opts=None):
        self.a = Asm()
        self.dump = dump
        self.ts = ts
        self.o = opts or {}
        self.V = Regs("v", 1, 256)
        self.nts = 0

    def stamp(self, i, pin=False):
        if self.ts:
            self.a(f"{'s_memtime' if self.o.get('cyc') else 's_memrealtime'} {sTS[2*i:2*i+2]}").pin = pin

    def reduce(self, v, op="v_add_f32"):
        a = self.a
        for m in ("row_shr:1 row_mask:0xf", "row_shr:2 row_mask:0xf", "row_shr:4 row_mask:0xf", "row_shr:8 row_mask:0xf",
                  "row_bcast:15 row_mask:0xa", "row_bcast:31 row_mask:0xc"):
            a(f"{op}_dpp {v}, {v}, {v} {m} bank_mask:0xf")

    def cmul(self, r, x, y):
        a = self.a
        a(f"v_pk_mul_f32 {r}, {x}, {y} op_sel_hi:[1,0]")
        a(f"v_pk_fma_f32 {r}, {x}, {y}, {r} op_sel:[1,1,0] op_sel_hi:[0,1,1] neg_lo:[1,0,0]")

    def spin_begin(self, name):
        a = self.a
        a(f"s_mov_b32 {sSPIN}, {SPIN}")
        a.label(name)

    def spin_end(self, name):
        a = self.a
        done = name + "_d"
        a(f"s_cbranch_scc1 {done}")
        a(f"s_sub_u32 {sSPIN}, {sSPIN}, 1")
        a(f"s_cbranch_scc0 {name}")
        a.label(done)

    def prologue(self):
        a, V = self.a, self.V
        self.stamp(0)
        a("s_cmp_ge_u32 s2, 0x100")
        a("s_cbranch_scc1 L_EXIT")
        a("s_load_dwordx16 s[4:19], s[0:1], 0")
        a("s_load_dwordx2 s[32:33], s[0:1], 112")
        a("s_load_dwordx8 s[20:27], s[0:1], 64")
        a("s_load_dwordx4 s[28:31], s[0:1], 96")
        self.lane = lane = V.alloc("lane")
        self.l4 = l4 = V.alloc("l4")
        self.l16 = l16 = V.alloc("l16")
        t0 = V.alloc("t0"); t1 = V.alloc("t1")
        self.x = x = V.alloc("x", 4); self.wr = wr = V.alloc("wr", 4); self.par = par = V.alloc("par", 4)
        self.prefetch_code()
        a(f"v_lshrrev_b32 {t0}, 6, v0")
        a(f"v_and_b32 {lane}, 63, v0")
        a(f"v_readfirstlane_b32 {sW}, {t0}")
        a(f"s_lshr_b32 {sJ}, s2, 3")
        a(f"s_and_b32 {sG}, s2, 7")
        a(f"s_lshl_b32 {sG}, {sG}, 4")
        a(f"s_lshr_b32 {sT[0]}, {sJ}, 1")
        a(f"s_add_u32 {sG}, {sG}, {sT[0]}")
        a(f"s_and_b32 {sPART}, {sJ}, 1")
        a(f"s_lshr_b32 {sT[1]}, s2, 2")
        a(f"s_lshl_b32 {sT[1]}, {sT[1]}, 3")
        a(f"s_add_u32 {sT[1]}, {sT[1]}, {sW}")
        a(f"s_lshl_b32 {sT[1]}, {sT[1]}, 2")
        a(f"s_and_b32 {sT[4]}, s2, 3")
        a(f"s_add_u32 {sT[1]}, {sT[1]}, {sT[4]}")
        a(f"s_sub_u32 {sROWK}, 0x7ff, {sT[1]}")
        a(f"s_lshl_b32 {sT[1]}, {sT[1]}, 10")
        a(f"v_lshlrev_b32 {l16}, 4, {lane}")
        a(f"v_add_u32 {t0}, {sT[1]}, {l16}")
        a(f"v_lshlrev_b32 {l4}, 2, {lane}")
        a(f"s_and_b32 {sC}, {sW}, 3")
        a(f"s_lshl_b32 {sT[2]}, {sG}, 2")
        a(f"s_add_u32 {sT[2]}, {sT[2]}, {sC}")
        a(f"s_lshl_b32 {sT[2]}, {sT[2]}, 8")
        a(f"v_add_u32 {t1}, {sT[2]}, {l4}")
        a(f"s_lshl_b32 {sT[3]}, {sG}, 3")
        a("s_waitcnt lgkmcnt(0)")
        a(f"global_load_dwordx4 {x}, {t0}, {pU}")
        a(f"s_load_dword {sE}, {pWS}, 0")
        a(f"s_load_dwordx2 {sLDT}, {pLDT}, {sT[3]}")
        a(f"s_load_dwordx2 {sDSK}, {pDSK}, {sT[3]}")
        a(f"global_load_dwordx4 {wr}, {l16}, {pWR}")
        for i, p in enumerate((pLA, pAI, pCR, pCI)):
            a(f"global_load_dword {par[i]}, {t1}, {p}")
        if self.o.get("ts9"): self.stamp(9)
        a(f"s_lshr_b32 {sT[0]}, {sJ}, 1")
        a(f"s_lshr_b32 {sT[1]}, {sT[0]}, 2")
        a(f"s_lshl_b32 {sT[1]}, {sT[1]}, 3")
        a(f"s_and_b32 {sT[2]}, s2, 7")
        a(f"s_add_u32 {sT[1]}, {sT[1]}, {sT[2]}")
        a(f"s_lshl_b32 {sT[1]}, {sT[1]}, 2")
        a(f"s_and_b32 {sT[0]}, {sT[0]}, 3")
        a(f"s_add_u32 {sSIG}, {sT[1]}, {sT[0]}")
        a(f"s_cmp_eq_u32 {sPART}, 1")
        a(f"s_cselect_b32 {sSIG}, {sSIG}, 127")
        a(f"s_cmp_lt_u32 {sSIG}, 86")
        a(f"s_cselect_b64 {sFFN}, -1, 0")
        a(f"s_cselect_b32 {sSIG}, {sSIG}, 0")
        V.release("t0", "t1")
        a(f"s_cmp_lt_u32 {sW}, 4")
        a("s_cbranch_scc0 L_KROLE")

    def stage_addrs(self):
        a, V = self.a, self.V
        lane = self.lane
        t0 = V.alloc("t0"); t1 = V.alloc("t1")
        self.sw = sw = V.alloc("sw"); self.sr = sr = V.alloc("sr"); self.ta = ta = V.alloc("ta0"); self.tb = tb = V.alloc("tb0")
        a(f"v_bfe_u32 {t0}, {lane}, 1, 3")
        a(f"v_xor_b32 {t0}, {sW}, {t0}")
        a(f"v_lshlrev_b32 {sw}, 7, {lane}")
        a(f"v_lshl_add_u32 {sw}, {t0}, 4, {sw}")
        a(f"v_and_b32 {t0}, 7, {lane}")
        a(f"v_lshrrev_b32 {t1}, 3, v0")
        a(f"v_lshlrev_b32 {ta}, 16, {t1}")
        a(f"v_lshl_add_u32 {ta}, {t0}, 4, {ta}")
        a(f"s_lshr_b32 {sT[0]}, s2, 5")
        a(f"s_lshl_b32 {sT[0]}, {sT[0]}, 12")
        a(f"s_and_b32 {sT[1]}, s2, 3")
        a(f"s_lshl_b32 {sT[1]}, {sT[1]}, 10")
        a(f"s_add_u32 {sT[0]}, {sT[0]}, {sT[1]}")
        a(f"s_and_b32 {sT[1]}, s2, 28")
        a(f"s_lshl_b32 {sT[1]}, {sT[1]}, 5")
        a(f"s_add_u32 {sT[0]}, {sT[0]}, {sT[1]}")
        a(f"s_add_u32 {sT[0]}, {sT[0]}, {W_T}")
        a(f"v_add_u32 {ta}, {sT[0]}, {ta}")
        a(f"v_add_u32 {tb}, 0x8000, {ta}")
        a(f"v_lshlrev_b32 {sr}, 7, {t1}")
        a(f"v_bfe_u32 {t1}, {t1}, 1, 3")
        a(f"v_xor_b32 {t1}, {t1}, {t0}")
        a(f"v_lshl_add_u32 {sr}, {t1}, 4, {sr}")
        self.sw2 = sw2 = V.alloc("sw2")
        a(f"v_add_u32 {sw2}, {STG + 8}, {sw}")
        a(f"v_add_u32 {sw}, {STG}, {sw}")
        a(f"v_add_u32 {sr}, {STG}, {sr}")
        V.release("t0", "t1")

    def prefetch_code(self):
        a, V = self.a, self.V
        t = V.alloc("pf")
        a(f"s_getpc_b64 {sTP[0]}")
        a.label(lab := a.newlabel("L_PC"))
        a(f"s_sub_u32 {sTP[0][0]}, {sTP[0][0]}, {lab}-L_BEGIN")
        a(f"s_subb_u32 {sTP[0][1]}, {sTP[0][1]}, 0")
        a(f"v_lshlrev_b32 {t}, 6, v0")
        a(f"v_min_u32 {t}, L_END-L_BEGIN-4, {t}")
        a(f"global_load_dword {t}, {t}, {sTP[0]}")

    def stats(self, role):
        a, V = self.a, self.V
        x, wr = self.x, self.wr
        acc = V.alloc("acc"); xf = V.alloc("xf", 8); mean = V.alloc("mean"); negm = V.alloc("negm")
        s2 = V.alloc("s2", 2); pk = V.alloc("pk", 4); ad = V.alloc("ad"); t = V.alloc("st"); wf = V.alloc("wf", 8)
        msk = V.alloc("msk"); kk = V.alloc("kk", 2); mi = V.alloc("smi")
        one = sT[0]
        sT0, sT1 = sX[2], sX[3]
        a(f"s_mul_i32 {sTAG}, {sE}, 0x9E3779B1")
        a(f"s_add_u32 {sTAG}, {sTAG}, 0x7F4A7C15")
        a(f"s_mov_b32 {sT[2]}, {sTAG}")
        a(f"s_mov_b32 {sT[3]}, {sTAG}")
        a(f"s_mul_i32 {sT[1]}, {sW}, 3")
        a(f"s_lshr_b64 {sTP[1]}, {sTP[1]}, {sT[1]}")
        a(f"s_and_b32 {sT0}, {sT[2]}, {TM:#x}")
        a(f"s_lshr_b32 {sT[2]}, {sT[2]}, 8")
        a(f"s_and_b32 {sT1}, {sT[2]}, {TM:#x}")
        a(f"s_mov_b32 {one}, 0x3f803f80")
        a(f"v_mov_b32 {msk}, {TM ^ 0xffffffff:#x}")
        a(f"v_mov_b32 {pk[1]}, {sTAG}")
        a(f"v_mov_b32 {pk[3]}, {sTAG}")
        a(f"v_mov_b32 {mi}, {MISC}")
        a(f"s_lshl_b32 {sT[1]}, s2, 3")
        a(f"s_add_u32 {sT[1]}, {sT[1]}, {W_CAND}")
        a(f"v_mov_b32 {ad}, {sT[1]}")
        G0 = V.alloc("G0", 4); G1 = V.alloc("G1", 4)
        a.begin()
        a(f"ds_write2st64_b64 {self.sw}, {x[0:2]}, {x[2:4]} offset1:16")
        a(f"v_dot2_f32_bf16 {acc}, {x[0]}, {one}, 0")
        for i in range(1, 4):
            a(f"v_dot2_f32_bf16 {acc}, {x[i]}, {one}, {acc}")
        self.stamp(1)
        self.reduce(acc)
        a(f"v_mul_f32 {mean}, 0x3b000000, {acc}")
        a(f"v_cvt_pk_bf16_f32 {negm}, 0, -{mean}")
        a(f"v_readlane_b32 {sT[2]}, {negm}, 63")
        for i in range(4):
            a(f"v_lshlrev_b32 {xf[2*i]}, 16, {x[i]}")
            a(f"v_and_b32 {xf[2*i+1]}, 0xffff0000, {x[i]}")
        a(f"v_add_f32 {mean}, {mean}, {negm}")
        for i in range(4):
            a(f"v_pk_add_f32 {xf[2*i:2*i+2]}, {xf[2*i:2*i+2]}, {sTP[1]} op_sel_hi:[1,0]")
        a(f"v_pk_mul_f32 {s2}, {xf[0:2]}, {xf[0:2]}")
        for i in range(1, 4):
            a(f"v_pk_fma_f32 {s2}, {xf[2*i:2*i+2]}, {xf[2*i:2*i+2]}, {s2}")
        a(f"v_add_f32 {acc}, {s2[0]}, {s2[1]}")
        self.reduce(acc)
        a(f"v_mul_f32 {acc}, 0x3b000000, {acc}")
        a(f"v_fma_f32 {acc}, -{mean}, {mean}, {acc}")
        a(f"v_max_f32 {acc}, 0, {acc}")
        a(f"v_cvt_pk_bf16_f32 {acc}, 0, {acc}")
        a(f"v_add_f32 {acc}, 0x3727c5ac, {acc}")
        a(f"v_cvt_pk_bf16_f32 {acc}, 0, {acc}")
        a(f"v_sqrt_f32 {acc}, {acc}")
        a(f"v_cvt_pk_bf16_f32 {t}, 0, {acc}")
        a(f"v_rcp_f32 {t}, {t}")
        a(f"v_cvt_pk_bf16_f32 {kk[0]}, {negm}, {acc}")
        for i in range(8):
            a(f"v_cvt_pk_bf16_f32 {xf[i]}, 0, {xf[i]}")
        a(f"v_readlane_b32 {sT[4]}, {t}, 63")
        for i in range(4):
            a(f"v_pk_mul_f32 {xf[2*i:2*i+2]}, {xf[2*i:2*i+2]}, {sTP[2]} op_sel_hi:[1,0]")
        for i in range(8):
            a(f"v_cvt_pk_bf16_f32 {xf[i]}, 0, {xf[i]}")
        for i in range(4):
            a(f"v_cvt_pk_f16_f32 {x[i]}, {xf[2*i]}, {xf[2*i+1]}")
            a(f"v_and_or_b32 {x[i]}, {x[i]}, {msk}, {sT1 if i & 1 else sT0}")
        a(f"ds_write2st64_b64 {self.sw2}, {x[0:2]}, {x[2:4]} offset1:16")
        a("s_waitcnt lgkmcnt(0)")
        a("s_barrier")
        a(f"ds_read_b128 {G0}, {self.sr}")
        a(f"ds_read_b128 {G1}, {self.sr} offset:8192")
        for i in range(4):
            a(f"v_lshlrev_b32 {wf[2*i]}, 16, {wr[i]}")
            a(f"v_and_b32 {wf[2*i+1]}, 0xffff0000, {wr[i]}")
        if self.o.get("kst") and role == "K": self.stamp(6, True)
        a(f"global_store_dwordx4 {self.ta}, {G0}, {pWS} sc1")
        if self.o.get("kst") and role == "K": self.stamp(9, True)
        a(f"global_store_dwordx4 {self.tb}, {G1}, {pWS} sc1")
        if self.o.get("kst") and role == "K": self.stamp(10, True)
        a(f"v_pk_mul_f32 {s2}, {xf[0:2]}, {wf[0:2]}")
        for i in range(1, 4):
            a(f"v_pk_fma_f32 {s2}, {xf[2*i:2*i+2]}, {wf[2*i:2*i+2]}, {s2}")
        a(f"v_add_f32 {acc}, {s2[0]}, {s2[1]}")
        self.reduce(acc)
        a(f"v_cvt_pk_bf16_f32 {acc}, 0, {acc}")
        a(f"v_ashrrev_i32 {t}, 31, {acc}")
        a(f"v_or_b32 {t}, 0x80000000, {t}")
        a(f"v_xor_b32 {t}, {t}, {acc}")
        a(f"v_and_b32 {t}, 0xffff0000, {t}")
        a(f"v_or_b32 {kk[1]}, {sROWK}, {t}")
        a(f"v_mov_b32 {negm}, 1")
        a(f"s_mov_b32 exec_lo, 0")
        a(f"s_mov_b32 exec_hi, 0x80000000")
        a(f"ds_max_u64 {mi}, {kk} offset:{M_KEY}")
        a(f"ds_add_rtn_u32 {negm}, {mi}, {negm} offset:{M_CNT}")
        a(f"ds_read_b32 {pk[0]}, {mi} offset:{M_KEY + 4}")
        a(f"ds_read_b32 {pk[2]}, {mi} offset:{M_KEY}")
        a(f"s_mov_b64 exec, -1")
        a.end()
        self.stamp(2)
        def publish():
            a(f"v_readlane_b32 {sT[0]}, {negm}, 63")
            a(f"s_cmp_eq_u32 {sT[0]}, 7")
            a(f"s_cselect_b32 exec_hi, 0x80000000, 0")
            a(f"s_mov_b32 exec_lo, 0")
            a(f"global_store_dwordx2 {ad}, {pk[0:2]}, {pWS} sc1")
            a(f"global_store_dwordx2 {ad}, {pk[2:4]}, {pWS} offset:{W_CST - W_CAND} sc1")
            a(f"s_mov_b64 exec, -1")
            V.release("negm", "pk", "ad")
        V.release("acc", "xf", "mean", "s2", "st", "x", "wr", "G0", "G1", "sw", "sw2", "sr", "ta0", "tb0", "wf", "msk", "kk", "smi")
        return publish

    def tab(self, role, publish):
        a, V = self.a, self.V
        par = self.par
        h = 0 if role == "U" else 1
        sel = sT[8]
        la = V.alloc("la"); C = V.alloc("C", 2); dt = V.alloc("dt", 2); mx = V.alloc("mx"); t = V.alloc("tt")
        aa = la; bb = V.alloc("bb")
        e1 = V.alloc("e1", 2); e8 = V.alloc("e8", 2); e256 = V.alloc("e256", 2); F2 = V.alloc("F2", 2)
        ad = V.alloc("tad")
        cv = [V.alloc(f"cv{i}") for i in range(6)]
        ncv = [0]
        def put(row, r, g):
            c = cv[ncv[0] % 6]; ncv[0] += 1
            if g:
                a(f"v_cvt_pk_f16_f32 {c}, {r[0]}, -{r[1]}")
            else:
                a(f"v_cvt_pk_f16_f32 {c}, {r[0]}, {r[1]}")
            a(f"ds_write_b32 {ad}, {c} offset:{row*ROWS}")
        a.begin()
        a(f"s_lshl_b32 {sT[9]}, {sC}, 4")
        a(f"s_lshr_b64 {sTP[1]}, {sLDT}, {sT[9]}")
        a(f"s_lshl_b32 {sT[2]}, {sT[2]}, 16")
        a(f"v_mov_b32 {dt[0]}, {sT[2]}")
        a(f"v_mul_f32 {dt[0]}, {LOG2E:#x}, {dt[0]}")
        a(f"v_exp_f32 {dt[0]}, {dt[0]}")
        if h == 0:
            a(f"v_lshlrev_b32 {la}, 16, {par[0]}")
            a(f"v_lshlrev_b32 {bb}, 16, {par[1]}")
            a(f"v_lshlrev_b32 {C[0]}, 16, {par[2]}")
            a(f"v_lshlrev_b32 {C[1]}, 16, {par[3]}")
        else:
            a(f"v_and_b32 {la}, 0xffff0000, {par[0]}")
            a(f"v_and_b32 {bb}, 0xffff0000, {par[1]}")
            a(f"v_and_b32 {C[0]}, 0xffff0000, {par[2]}")
            a(f"v_and_b32 {C[1]}, 0xffff0000, {par[3]}")
        a(f"v_mul_f32 {la}, {LOG2E:#x}, {la}")
        a(f"v_exp_f32 {la}, {la}")
        a(f"v_cvt_pk_bf16_f32 {dt[0]}, 0, {dt[0]}")
        a(f"v_cvt_pk_bf16_f32 {la}, 0, {la}")
        a.end()
        publish()
        a.begin()
        a(f"s_lshr_b32 {sT[0]}, {sC}, 1")
        a(f"s_mul_i32 {sT[0]}, {sT[0]}, {TABP}")
        a(f"s_and_b32 {sT[1]}, {sC}, 1")
        a(f"s_lshl_b32 {sT[1]}, {sT[1]}, 9")
        a(f"s_add_u32 {sT[0]}, {sT[0]}, {sT[1]}")
        if h: a(f"s_add_u32 {sT[0]}, {sT[0]}, 256")
        a(f"v_add_u32 {ad}, {sT[0]}, {self.l4}")
        a(f"v_mul_f32 {aa}, {la}, {dt[0]}")
        a(f"v_mul_f32 {aa}, {LOG2E | 0x80000000:#x}, {aa}")
        a(f"v_mul_f32 {bb}, {bb}, {dt[0]}")
        a(f"v_mul_f32 {bb}, {INV2PI:#x}, {bb}")
        a(f"v_and_b32 {par[2]}, 0x7fff7fff, {par[2]}")
        a(f"v_and_b32 {par[3]}, 0x7fff7fff, {par[3]}")
        a(f"v_pk_max_u16 {mx}, {par[2]}, {par[3]}")
        a(f"v_lshlrev_b32 {t}, 16, {mx}")
        a(f"v_max_u32 {mx}, {mx}, {t}")
        def base(e, k):
            tm = par[0]; tf = par[1]
            if k == 1:
                a(f"v_exp_f32 {tm}, {aa}")
                a(f"v_fract_f32 {tf}, {bb}")
            else:
                lit = {8: "0x41000000", 256: "0x43800000"}[k]
                a(f"v_mul_f32 {tm}, {lit}, {aa}")
                a(f"v_mul_f32 {tf}, {lit}, {bb}")
                a(f"v_exp_f32 {tm}, {tm}")
                a(f"v_fract_f32 {tf}, {tf}")
            a(f"v_cos_f32 {e[0]}, {tf}")
            a(f"v_sin_f32 {e[1]}, {tf}")
            a(f"v_pk_mul_f32 {e}, {e}, {par[0:2]} op_sel_hi:[1,0]")
        base(e8, 8)
        self.reduce(mx, "v_max_u32")
        a(f"v_and_b32 {mx}, 0xffff0000, {mx}")
        a(f"v_mul_f32 {mx}, {mx}, {dt[0]}")
        a(f"v_readlane_b32 {sT[2]}, {mx}, 63")
        a(f"s_lshr_b32 {sT[2]}, {sT[2]}, 23")
        a(f"s_max_u32 {sT[2]}, {sT[2]}, 10")
        a(f"s_min_u32 {sT[2]}, {sT[2]}, 254")
        a(f"s_sub_u32 {sT[4]}, 261, {sT[2]}")
        a(f"s_lshl_b32 {sT[4]}, {sT[4]}, 23")
        a(f"s_sub_u32 {sT[6]}, {sT[2]}, 6")
        a(f"s_lshl_b32 {sT[6]}, {sT[6]}, 23")
        a(f"v_pk_mul_f32 {C}, {C}, {dt} op_sel_hi:[1,0]")
        base(e1, 1)
        base(e256, 256)
        a(f"v_mov_b32 {t}, 0x3c00")
        a(f"ds_write_b32 {ad}, {t}")
        put(1, e8, False)
        self.cmul(F2, e8, e8)
        put(2, F2, False)
        Fa = [V.alloc(f"Fa{i}", 2) for i in range(2)]; Fb = [V.alloc(f"Fb{i}", 2) for i in range(2)]
        pe, po = F2, e8
        G = [C] + [V.alloc(f"G{i}", 2) for i in range(1, 8)]
        H = [V.alloc(f"H{i}", 2) for i in range(4)]
        def gsteps():
            a(f"v_pk_mul_f32 {C}, {C}, {sTP[2]} op_sel_hi:[1,0]"); put(32, C, True); yield
            for i in range(1, 8):
                self.cmul(G[i], G[i-1], e1); put(32 + i, G[i], True); yield
            self.cmul(H[0], G[0], e256); put(40, H[0], True); yield
            self.cmul(H[1], G[4], e256); put(44, H[1], True); yield
            self.cmul(H[2], G[2], e256); put(41, H[2], True); yield
            self.cmul(H[3], G[6], e256); put(45, H[3], True); yield
            self.cmul(G[1], H[0], e256); put(42, G[1], True); yield
            self.cmul(G[3], H[1], e256); put(43, G[3], True); yield
            self.cmul(G[5], G[1], e256); put(46, G[5], True); yield
            self.cmul(G[7], G[3], e256); put(47, G[7], True); yield
            p = G[5]
            for i, q in enumerate((H[0], H[1], H[2], H[3], G[2])):
                self.cmul(q, p, e256); put(48 + i, q, True); p = q; yield
        gs = gsteps()
        for k in range(3, 32):
            if k & 1:
                r = Fb[(k >> 1) & 1]; self.cmul(r, po, F2); po = r
            else:
                r = Fa[(k >> 1) & 1]; self.cmul(r, pe, F2); pe = r
            put(k, r, False)
            if k >= 9: next(gs, None)
        for _ in gs: pass
        if role == "K":
            a(f"s_lshl_b32 {sT[0]}, {sC}, 2")
            a(f"s_add_u32 {sT[0]}, {sT[0]}, {MISC + M_INV}")
            a(f"v_mov_b32 {t}, {sT[0]}")
            a(f"v_mov_b32 {mx}, {sT[6]}")
            a(f"ds_write_b32 {t}, {mx}")
        a.end()
        for n in ["la", "C", "dt", "mx", "tt", "bb", "e1", "e8", "e256", "F2", "tad", "par"] + [f"cv{i}" for i in range(6)] + \
                 [f"Fa{i}" for i in range(2)] + [f"Fb{i}" for i in range(2)] + [f"G{i}" for i in range(1, 8)] + [f"H{i}" for i in range(4)]:
            V.release(n)
        a("s_waitcnt lgkmcnt(0)")
        self.stamp(3)
        a("s_barrier")

    def dump_lds(self, tag):
        if self.dump == tag:
            self.a("s_branch L_DUMP")
            self.a.label(self.a.newlabel("L_dead"))

    def emit_dump(self):
        a = self.a
        a.label("L_DUMP")
        a("s_mov_b64 exec, -1")
        a("s_waitcnt vmcnt(0) lgkmcnt(0)")
        a("s_barrier")
        a("v_lshlrev_b32 v1, 4, v0")
        a(f"s_mul_i32 s50, s2, {LDS}")
        a(f"s_add_u32 s50, s50, {W_DUMP}")
        a("v_add_u32 v2, s50, v1")
        for i in range(20):
            a("ds_read_b128 v[4:7], v1")
            a("global_store_dwordx4 v2, v[4:7], s[32:33]")
            a("v_add_u32 v1, 0x2000, v1")
            a("v_add_u32 v2, 0x2000, v2")
        a("s_branch L_FIN")

    def finish(self):
        a = self.a
        a.label("L_FIN")
        if self.ts:
            self.stamp(11)
            a("s_mov_b64 exec, -1")
            a("s_waitcnt lgkmcnt(0)")
            a("v_mov_b32 v1, 0")
            for i in range(12):
                a(f"v_writelane_b32 v1, {sTS[2*i]}, {i}")
            a(f"s_lshl_b32 s50, s2, 3")
            a(f"s_add_u32 s50, s50, {sW}")
            a(f"s_lshl_b32 s50, s50, 6")
            a(f"s_add_u32 s50, s50, {W_TS}")
            a("v_and_b32 v2, 63, v0")
            a("v_lshlrev_b32 v2, 2, v2")
            a("v_add_u32 v2, s50, v2")
            a("s_mov_b64 exec, 0xffff")
            a("global_store_dword v2, v1, s[32:33]")
            if self.o.get("dbg") == "X":
                a(f"s_not_b32 s50, {sTS[0]}")
                a("v_mov_b32 v1, 0")
                a("s_and_b32 s51, s2, 7")
                a("s_mov_b32 m0, s51")
                a(f"v_writelane_b32 v1, {sTS[2*int(self.o.get('xs','0'))]}, m0")
                a("s_add_u32 m0, s51, 8")
                a("v_writelane_b32 v1, s50, m0")
                a("v_and_b32 v2, 63, v0")
                a("v_lshlrev_b32 v2, 2, v2")
                a("global_atomic_umax v2, v1, s[30:31]")
            elif self.o.get("dbg"):
                a(f"s_not_b32 s50, {sTS[0]}")
                a("v_writelane_b32 v1, s50, 12")
                a("v_and_b32 v2, 63, v0")
                a("v_lshlrev_b32 v2, 2, v2")
                a(f"s_cmp_lt_u32 {sW}, 4")
                a(f"s_cselect_b64 exec, {'0xffff, 0' if self.o['dbg'] == 'U' else '0, 0xffff'}")
                a("global_atomic_umax v2, v1, s[30:31]")
        a.label("L_EXIT")
        a("s_endpgm")
        a.label("L_END")

    def build(self):
        from gen_roles import urole, krole
        a = self.a
        a.label("L_BEGIN")
        self.prologue()
        snap = self.V.snapshot()
        urole(self)
        a("s_branch L_FIN")
        self.V.restore(snap)
        a.label("L_KROLE")
        krole(self)
        if self.dump:
            a("s_branch L_FIN")
            self.emit_dump()
        self.finish()
        body = a.text()
        ref = open(REF).read()
        head = ref[:ref.index(f"{NAME}_kernel:") + len(f"{NAME}_kernel:")]
        head = head.replace("; @launch grid=(4096,1,1) block=(256,1,1) lds=0", f"; @launch grid=(256,1,1) block=(512,1,1) lds={LDS}")
        foot = ref[ref.index('.section .rodata,"a"'):]
        nv = (self.V.high + 3) // 4 * 4
        foot = foot.replace(".amdhsa_next_free_vgpr 256", f".amdhsa_next_free_vgpr {nv}").replace(".amdhsa_accum_offset 256", f".amdhsa_accum_offset {nv}")
        return head + "\n" + body + "\n" + foot


if __name__ == "__main__":
    import argparse
    p = argparse.ArgumentParser()
    p.add_argument("-o", default=f"cdna_kernels/{NAME}.s")
    p.add_argument("--dump", default=None)
    p.add_argument("--ts", action="store_true")
    p.add_argument("--opt", action="append", default=[])
    g = p.parse_args()
    opts = dict((o.split("=") + ["1"])[:2] for o in g.opt)
    gen = Gen(g.dump, g.ts, opts)
    txt = gen.build()
    open(g.o, "w").write(txt)
    print("written", g.o, "vgprs", gen.V.high, "lines", txt.count("\n"))
```

```python
from gen3 import *


def conv(G, part, A, Zf, box, bA, wA, exA, mi):
    a, V = G.a, G.V
    tiles = OWN[part]
    snap = V.snapshot()
    acc = {T: V.alloc(f"acc{T}", 4) for T in tiles}
    NB = 8
    Bb = [V.alloc(f"B{i}", 4) for i in range(NB)]
    one = V.alloc("one")
    nR = max(tiles) - 3
    W = [V.alloc(f"W{i}", 4) for i in range(nR)]
    S9 = V.alloc("S9", 4); S7 = V.alloc("S7", 4)
    started = set()
    def mf(T, Af, Bf):
        c = acc[T] if T in started else "0"
        started.add(T)
        a(f"v_mfma_f32_16x16x32_f16 {acc[T]}, {Af}, {Bf}, {c}")
    loads = [(g, r) for g in range(max(tiles) + 1) for r in range(8)]
    def ld(i):
        g, r = loads[i]
        a(f"ds_read_b128 {Bb[i % NB]}, {bA} offset:{448 + 512*g - 64*r}")
    for i in range(NB):
        ld(i)
    a(f"v_mov_b32 {one}, 1")
    for R in range(nR):
        a(f"ds_read2_b64 {W[R]}, {wA} offset0:{64*R} offset1:{64*R+1}")
    seg3 = {T: [(R, T - R - 4) for R in range(nR) if T - R - 4 >= 0] for T in tiles}
    boxdone = set()
    def box_step(R):
        a(f"v_mfma_f32_16x16x32_f16 {S9}, {W[R]}, {box[0]}, 0")
        a(f"v_mfma_f32_16x16x32_f16 {S7}, {W[R]}, {box[1]}, 0")
    def box_cvt(R):
        for r in range(4):
            a(f"v_cvt_pk_f16_f32 {W[R][r]}, {S9[r]}, {S7[r]}")
        boxdone.add(R)
    slot = {T: i for i, T in enumerate(tiles)}
    def fin(T):
        a(f"ds_write_b128 {exA}, {acc[T]} offset:{EX + slot[T]*4096}")
        G.lane0_add(mi, one, M_EXC + 16*slot[T])
    pend_fin = []
    for i, (g, r) in enumerate(loads):
        Bf = Bb[i % NB]
        for T in tiles:
            b = T - g
            if 0 <= b <= 3:
                mf(T, A[8*b + r], Bf)
            if b == 4 and r == 0:
                mf(T, A[32], Bf)
        if i + NB < len(loads):
            ld(i + NB)
        if r == 1 and 1 <= g <= nR:
            box_step(g - 1)
        if r == 4 and 1 <= g <= nR:
            box_cvt(g - 1)
        if r == 6:
            for T in tiles:
                for (R, d) in list(seg3[T]):
                    if R in boxdone:
                        mf(T, W[R], Zf[d]); seg3[T].remove((R, d))
        if r == 2 and pend_fin:
            for T in pend_fin: fin(T)
            pend_fin = []
        if r == 7 and g in tiles:
            assert not seg3[g], (part, g, seg3)
            pend_fin.append(g)
    for T in pend_fin: fin(T)
    V.restore(snap)


def tab(G, sTB, A, tA, dmas):
    a, V = G.a, G.V
    par = G.W[4:8]
    P = lambda n: V.alloc(n, 2)
    la, bb, tm, tf, dt = P("la"), P("bb"), P("tm"), P("tf"), P("dt")
    mx = V.alloc("mx"); t = V.alloc("tt"); ad = V.alloc("tad")
    M2 = lambda n: [P(n + "0"), P(n + "1")]
    C, e1, e8, e256, F2 = M2("C"), M2("e1"), M2("e8"), M2("e256"), M2("F2")
    cv = [P(f"cv{i}") for i in range(4)]
    ncv = [0]
    dq = list(dmas)
    def put(row, r, g):
        c = cv[ncv[0] % 4]; ncv[0] += 1
        for m in range(2):
            a(f"v_cvt_pk_f16_f32 {c[m]}, {r[m][0]}, {'-' if g else ''}{r[m][1]}")
        a(f"ds_write_b64 {ad}, {c} offset:{row*ROWS}")
        while dq and dq[0][0] <= ncv[0]:
            dq.pop(0)[1]()
    def cm(r, x, y):
        for m in range(2): G.cmul(r[m], x[m], y[m])
    cL, cNL, cI, c8, c256 = sTP[0], sTP[1], sTP[2], sTP[3], sTP[4]
    a(f"s_mov_b32 {cL[0]}, {LOG2E:#x}")
    a(f"s_mov_b32 {cNL[0]}, {LOG2E | 0x80000000:#x}")
    a(f"s_mov_b32 {cI[0]}, {INV2PI:#x}")
    a(f"s_mov_b32 {c8[0]}, 0x41000000")
    a(f"s_mov_b32 {c256[0]}, 0x43800000")
    a(f"v_lshl_add_u32 {ad}, {G.lane}, 3, {sTB}")
    a(f"s_lshl_b32 {sX[0]}, {sC}, 4")
    a(f"s_lshr_b64 {S(sX[2].b, 2)}, {sLDT}, {sX[0]}")
    a(f"s_lshl_b32 {sX[2]}, {sX[2]}, 16")
    a(f"v_mov_b32 {dt[0]}, {sX[2]}")
    a(f"v_mul_f32 {dt[0]}, {LOG2E:#x}, {dt[0]}")
    a(f"v_exp_f32 {dt[0]}, {dt[0]}")
    a(f"v_mov_b32 {tm[0]}, 0x3c00")
    a(f"v_mov_b32 {tm[1]}, 0x3c00")
    a(f"ds_write_b64 {ad}, {tm}")
    a(f"v_cvt_pk_bf16_f32 {dt[0]}, 0, {dt[0]}")
    a.begin()
    a(f"v_lshlrev_b32 {la[0]}, 16, {par[0]}")
    G.stamp(1)
    a(f"v_and_b32 {la[1]}, 0xffff0000, {par[0]}")
    a(f"v_pk_mul_f32 {la}, {la}, {cL} op_sel_hi:[1,0]")
    a(f"v_lshlrev_b32 {bb[0]}, 16, {par[1]}")
    a(f"v_and_b32 {bb[1]}, 0xffff0000, {par[1]}")
    for m in range(2): a(f"v_exp_f32 {la[m]}, {la[m]}")
    a(f"v_pk_mul_f32 {bb}, {bb}, {dt} op_sel_hi:[1,0]")
    a(f"v_pk_mul_f32 {bb}, {bb}, {cI} op_sel_hi:[1,0]")
    for m in range(2): a(f"v_cvt_pk_bf16_f32 {la[m]}, 0, {la[m]}")
    a(f"v_pk_mul_f32 {la}, {la}, {dt} op_sel_hi:[1,0]")
    a(f"v_pk_mul_f32 {la}, {la}, {cNL} op_sel_hi:[1,0]")
    def base(e, k, tm, tf):
        if k is None:
            for m in range(2): a(f"v_exp_f32 {tm[m]}, {la[m]}")
            for m in range(2): a(f"v_fract_f32 {tf[m]}, {bb[m]}")
        else:
            a(f"v_pk_mul_f32 {tf}, {bb}, {k} op_sel_hi:[1,0]")
            a(f"v_pk_mul_f32 {tm}, {la}, {k} op_sel_hi:[1,0]")
            for m in range(2): a(f"v_fract_f32 {tf[m]}, {tf[m]}")
            for m in range(2): a(f"v_exp_f32 {tm[m]}, {tm[m]}")
        for m in range(2):
            a(f"v_cos_f32 {e[m][0]}, {tf[m]}")
            a(f"v_sin_f32 {e[m][1]}, {tf[m]}")
        a(f"v_pk_mul_f32 {e[0]}, {e[0]}, {tm} op_sel_hi:[1,0]")
        a(f"v_pk_mul_f32 {e[1]}, {e[1]}, {tm} op_sel:[0,1] op_sel_hi:[1,1]")
    base(e8, c8, tm, tf)
    put(1, e8, False)
    cm(F2, e8, e8)
    put(2, F2, False)
    Fa = [M2("Fa0"), M2("Fa1")]; Fb = [M2("Fb0"), M2("Fb1")]
    Gs = [C] + [M2(f"Gs{i}") for i in range(1, 8)]
    H = [M2(f"H{i}") for i in range(4)]
    tm2, tf2 = P("tm2"), P("tf2")
    def side():
        a(f"v_and_b32 {mx}, 0x7fff7fff, {par[2]}")
        a(f"v_and_b32 {t}, 0x7fff7fff, {par[3]}")
        a(f"v_pk_max_u16 {mx}, {mx}, {t}")
        a(f"v_lshlrev_b32 {t}, 16, {mx}")
        a(f"v_max_u32 {mx}, {mx}, {t}")
        yield
        G.reduce(mx, "v_max_u32")
        yield
        a(f"v_and_b32 {mx}, 0xffff0000, {mx}")
        a(f"v_mul_f32 {mx}, {mx}, {dt[0]}")
        a(f"v_readlane_b32 {sX[0]}, {mx}, 63")
        a(f"v_lshlrev_b32 {C[0][0]}, 16, {par[2]}")
        a(f"v_lshlrev_b32 {C[0][1]}, 16, {par[3]}")
        a(f"v_and_b32 {C[1][0]}, 0xffff0000, {par[2]}")
        a(f"v_and_b32 {C[1][1]}, 0xffff0000, {par[3]}")
        a(f"s_lshr_b32 {sX[0]}, {sX[0]}, 23")
        a(f"s_max_u32 {sX[0]}, {sX[0]}, 10")
        a(f"s_min_u32 {sX[0]}, {sX[0]}, 254")
        a(f"s_sub_u32 {sX[2]}, 261, {sX[0]}")
        a(f"s_lshl_b32 {sX[2]}, {sX[2]}, 23")
        a(f"s_sub_u32 {sX[1]}, {sX[0]}, 6")
        a(f"s_lshl_b32 {sX[1]}, {sX[1]}, 23")
        for m in range(2): a(f"v_pk_mul_f32 {C[m]}, {C[m]}, {dt} op_sel_hi:[1,0]")
        yield
        base(e1, None, tm2, tf2)
        yield
        base(e256, c256, tm2, tf2)
        yield
        for m in range(2): a(f"v_pk_mul_f32 {C[m]}, {C[m]}, {S(sX[2].b, 2)} op_sel_hi:[1,0]")
        a(f"s_lshl_b32 {sX[0]}, {sC}, 2")
        a(f"s_add_u32 {sX[0]}, {sX[0]}, {MISC + M_INV}")
        a(f"v_mov_b32 {t}, {sX[0]}")
        a(f"v_mov_b32 {mx}, {sX[1]}")
        a(f"ds_write_b32 {t}, {mx}")
    sd = side()
    pe, po = F2, e8
    for k in range(3, 32):
        if k & 1:
            r = Fb[(k >> 1) & 1]; cm(r, po, F2); po = r
        else:
            r = Fa[(k >> 1) & 1]; cm(r, pe, F2); pe = r
        put(k, r, False)
        if k % 4 == 0: next(sd, None)
    for _ in sd: pass
    nf = [0]
    def fr():
        if nf[0] < 16:
            st = nf[0]; nf[0] += 1
            a(f"ds_read_b128 {A[2*st+1]}, {tA} offset:{32*st}")
    put(32, C, True); fr()
    for i in range(1, 8):
        cm(Gs[i], Gs[i-1], e1); put(32 + i, Gs[i], True); fr()
    for (r, x, row) in ((H[0], Gs[0], 40), (H[1], Gs[4], 44), (H[2], Gs[2], 41), (H[3], Gs[6], 45),
                        (Gs[1], H[0], 42), (Gs[3], H[1], 43), (Gs[5], Gs[1], 46), (Gs[7], Gs[3], 47)):
        cm(r, x, e256); put(row, r, True); fr()
    p = Gs[5]
    for i, q in enumerate((H[0], H[1], H[2], H[3], Gs[2])):
        cm(q, p, e256); put(48 + i, q, True); p = q
    while dq: dq.pop(0)[1]()
    a.end()


def krole(G):
    a, V = G.a, G.V
    lane, l4, l16 = G.lane, G.l4, G.l16
    V.release("X", "wa", "r8", "z")
    ga = V.alloc("ga"); t = V.alloc("kt"); t2 = V.alloc("kt2")
    sGU, sTB = S(70), S(71)
    G.ffn_ids()
    a(f"v_lshrrev_b32 {ga}, 1, {lane}")
    a(f"s_lshl_b32 {sT[0]}, {sC}, 7")
    a(f"v_add_u32 {ga}, {sT[0]}, {ga}")
    a(f"v_mul_u32_u24 {ga}, 2752, {ga}")
    a(f"v_and_b32 {t}, 16, {l16}")
    a(f"s_lshl_b32 {sT[0]}, {sSIG}, 5")
    a(f"v_add3_u32 {ga}, {ga}, {t}, {sT[0]}")
    a(f"s_lshl_b32 {sGU}, {sC}, 13")
    a(f"s_add_u32 {sGU}, {sGU}, {GU}")
    def dma1(i):
        def f():
            a(f"s_mov_b64 exec, {sFFN}").pin = True
            a(f"s_add_u32 m0, {sGU}, {1024*i}").pin = True
            a(f"global_load_lds_dwordx4 {ga}, {pWG}").pin = True
            a(f"s_add_u32 m0, {sGU}, {4096 + 1024*i}").pin = True
            a(f"global_load_lds_dwordx4 {ga}, {pWU}").pin = True
            a(f"s_mov_b64 exec, -1").pin = True
            if i < 3: a(f"v_add_u32 {ga}, {32*2752}, {ga}").pin = True
        return f
    d0 = int(G.o.get("dma", "1")); ds_ = int(G.o.get("dstep", "2"))
    dmas = [(d0 + ds_ * i, dma1(i)) for i in range(4)]
    if d0 == 0:
        for _, f in dmas: f()
        dmas = []
    a15 = V.alloc("a15"); g4 = V.alloc("g4")
    tA = V.alloc("tA"); p0 = V.alloc("p0"); p2 = V.alloc("p2"); zw = V.alloc("zw"); tl = V.alloc("tl"); tsel = V.alloc("tsel")
    fA = [V.alloc(f"fA{i}") for i in range(5)]
    zA = V.alloc("zA"); bA = V.alloc("bA"); wA = V.alloc("wA"); exA = V.alloc("exA"); mi = V.alloc("kmi")
    box = [V.alloc("box9", 4), V.alloc("box7", 4)]
    sh = V.alloc("sh", 2)
    a(f"v_and_b32 {a15}, 15, {lane}")
    a(f"v_lshrrev_b32 {g4}, 4, {lane}")
    a(f"s_mul_i32 {sTB}, {sC}, {TABC}")
    a(f"v_and_b32 {t}, 31, {lane}")
    a(f"v_lshrrev_b32 {t2}, 5, {lane}")
    a(f"v_mul_u32_u24 {tA}, {ROWS}, {t}")
    a(f"v_lshl_add_u32 {tA}, {t2}, 4, {tA}")
    a(f"v_add_u32 {tA}, {sTB}, {tA}")
    sPZ = sTB
    a(f"v_lshlrev_b32 {p0}, 5, {t}")
    a(f"v_lshl_add_u32 {p0}, {t2}, 4, {p0}")
    a(f"v_add_u32 {p0}, {sPZ}, {p0}")
    a(f"v_lshl_add_u32 {p2}, {lane}, 5, {sPZ}")
    a(f"v_lshlrev_b32 {zw}, 1, {t}")
    a(f"v_lshl_add_u32 {zw}, {t2}, 8, {zw}")
    a(f"v_add_u32 {zw}, {sPZ}, {zw}")
    a(f"v_add_u32 {tl}, {sPZ}, {l4}")
    a(f"v_lshlrev_b32 {t}, 3, {g4}")
    a(f"v_sub_u32 {t}, {a15}, {t}")
    a(f"s_add_u32 {sT[3]}, {sPZ}, 96")
    a(f"v_lshl_add_u32 {fA[0]}, {t}, 2, {sT[3]}")
    for i in range(1, 5):
        a(f"v_add_u32 {fA[i]}, {1024*i}, {fA[0]}")
    a(f"v_sub_u32 {t2}, 15, {t}")
    for bx, lo in ((box[0], 0x1ff << 23), (box[1], 0x7f << 16)):
        a(f"s_mov_b32 {sT[4]}, {lo:#x}")
        a(f"s_mov_b32 {sT[5]}, 0")
        a(f"v_lshrrev_b64 {sh}, {t2}, {sTP[2]}")
        a(f"v_and_b32 {sh[0]}, 0xff, {sh[0]}")
        a(f"v_lshl_or_b32 {sh[0]}, {sh[0]}, 15, {sh[0]}")
        for i in range(4):
            a(f"v_lshrrev_b32 {bx[i]}, {2*i}, {sh[0]}")
            a(f"v_and_b32 {bx[i]}, 0x10001, {bx[i]}")
            a(f"v_mul_u32_u24 {bx[i]}, 0x3c00, {bx[i]}")
    a(f"v_lshlrev_b32 {t}, 2, {g4}")
    a(f"v_sub_u32 {t}, {a15}, {t}")
    a(f"s_add_u32 {sT[3]}, {sPZ}, {ZOFF + 48}")
    a(f"v_lshl_add_u32 {zA}, {t}, 2, {sT[3]}")
    a(f"s_mul_i32 {sT[3]}, {sC}, {UTC}")
    a(f"s_add_u32 {sT[3]}, {sT[3]}, {UT + 32}")
    a(f"v_lshl_add_u32 {t}, {g4}, 4, {sT[3]}")
    a(f"v_lshl_add_u32 {bA}, {a15}, 5, {t}")
    a(f"v_xor_b32 {wA}, 3, {a15}")
    a(f"v_lshl_add_u32 {wA}, {wA}, 5, {t}")
    a(f"v_add_u32 {wA}, {456 - 32}, {wA}")
    a(f"s_lshl_b32 {sT[3]}, {sC}, 10")
    a(f"v_lshl_add_u32 {t}, {g4}, 4, {sT[3]}")
    a(f"v_lshl_add_u32 {exA}, {a15}, 6, {t}")
    a(f"v_mov_b32 {mi}, {MISC}")
    a(f"v_mov_b32 {tsel}, 0x0c0c0c0c")
    for n, val in ((13, 0x03020c0c), (12, 0x03020302), (6, 0x01000302), (5, 0x01000100)):
        a(f"s_mov_b64 exec, {(1 << n) - 1:#x}")
        a(f"v_mov_b32 {tsel}, {val:#x}")
    a(f"s_mov_b64 exec, -1")
    V.release("sh", "a15", "g4")
    A = [V.alloc(f"A{s}", 4) if s & 1 else None for s in range(33)]
    snap = V.snapshot()
    tab(G, sTB, A, tA, dmas)
    V.restore(snap)
    V.release("W", "ga")
    for s in range(0, 33, 2): A[s] = V.alloc(f"A{s}", 4)
    G.stamp(3)
    G.dump_lds("tab")
    D = V.alloc("D", 16)
    for st in range(16):
        a(f"ds_read_b128 {A[2*st]}, {tA} offset:{32*ROWS + 32*st}")
    a(f"v_mov_b32 {t}, 0")
    a(f"s_mov_b64 exec, 0xffff")
    a(f"ds_write_b32 {tl}, {t}")
    a(f"s_mov_b64 exec, -1")
    for st in range(16):
        a(f"v_mfma_f32_32x32x16_f16 {D}, {A[2*st]}, {A[2*st+1]}, {D if st else 0}")
    G.stamp(4)
    w = V.alloc("pw", 20)
    nx = V.alloc("nx")
    a.begin()
    a(f"v_cvt_pk_f16_f32 {w[0]}, {D[4]}, {D[4]}")
    a(f"v_cvt_pk_f16_f32 {w[1]}, {D[4]}, {D[4]}")
    a(f"v_cvt_pk_f16_f32 {w[2]}, {D[5]}, {D[4]}")
    a(f"v_cvt_pk_f16_f32 {w[3]}, {D[5]}, {D[5]}")
    a(f"ds_write_b128 {p0}, {w[0:4]} offset:{64 + 1024}")
    a(f"ds_write_b16 {p0}, {w[0]} offset:{64 + 1024 - 4}")
    a(f"v_cvt_pk_f16_f32 {w[4]}, {D[0]}, 0")
    a(f"v_cvt_pk_f16_f32 {w[5]}, {D[1]}, {D[0]}")
    a(f"v_cvt_pk_f16_f32 {w[6]}, {D[2]}, {D[1]}")
    a(f"v_cvt_pk_f16_f32 {w[7]}, {D[3]}, {D[2]}")
    a(f"ds_write_b128 {p0}, {w[4:8]} offset:64")
    a(f"ds_write_b16 {p0}, {w[7]} offset:{64 + 16 + 2}")
    a(f"v_mov_b32_dpp {nx}, {D[8]} wave_rol:1 {DPPM}")
    a(f"v_mov_b32_dpp {nx}, {D[6]} wave_shl:1 {DPPM}")
    a(f"v_cvt_pk_f16_f32 {w[8]}, {D[6]}, {D[6]}")
    a(f"v_cvt_pk_f16_f32 {w[9]}, {D[6]}, {D[6]}")
    a(f"v_cvt_pk_f16_f32 {w[10]}, {D[6]}, {D[6]}")
    a(f"v_cvt_pk_f16_f32 {w[11]}, {D[7]}, {D[6]}")
    a(f"v_cvt_pk_f16_f32 {w[12]}, {D[7]}, {D[7]}")
    a(f"v_cvt_pk_f16_f32 {w[13]}, {D[7]}, {D[7]}")
    a(f"v_cvt_pk_f16_f32 {w[14]}, {nx}, {D[7]}")
    a(f"v_cvt_pk_f16_f32 {w[15]}, {nx}, {nx}")
    a(f"ds_write_b128 {p2}, {w[8:12]} offset:{64 + 2048}")
    a(f"ds_write_b128 {p2}, {w[12:16]} offset:{64 + 2048 + 16}")
    a(f"ds_write_b16 {p2}, {w[8]} offset:{64 + 2048 - 4}")
    a(f"v_cvt_pk_f16_f32 {w[16]}, {D[8]}, {D[9]}")
    a(f"v_cvt_pk_f16_f32 {w[17]}, {D[10]}, {D[11]}")
    a(f"v_readlane_b32 {sT[0]}, {w[16]}, 0")
    a(f"v_readlane_b32 {sT[1]}, {w[16]}, 1")
    a(f"s_pack_ll_b32_b16 {sT[0]}, {sT[0]}, {sT[1]}")
    a(f"v_perm_b32 {w[18]}, {sT[0]}, {sT[0]}, {tsel}")
    a(f"ds_write_b32 {tl}, {w[18]} offset:{4*1040}")
    a(f"s_mov_b64 exec, -4")
    a(f"ds_write_b16 {zw}, {w[16]} offset:{ZOFF + 56}")
    a(f"s_mov_b64 exec, 0xffffffff")
    a(f"ds_write_b16_d16_hi {zw}, {w[16]} offset:{ZOFF + 56 + 64}")
    a(f"ds_write_b16 {zw}, {w[17]} offset:{ZOFF + 56 + 128}")
    a(f"ds_write_b16_d16_hi {zw}, {w[17]} offset:{ZOFF + 56 + 192}")
    a(f"s_mov_b64 exec, -1")
    a.end()
    V.release("pw", "nx", "D", "p0", "p2", "zw", "tl", "tsel", "tA")
    for s in range(33):
        o = 32 * (s & 7)
        a(f"ds_read2_b32 {A[s][0:2]}, {fA[s >> 3]} offset0:{o+8} offset1:{o+6}")
        a(f"ds_read2_b32 {A[s][2:4]}, {fA[s >> 3]} offset0:{o+4} offset1:{o+2}")
    G.stamp(5)
    for n in [f"fA{i}" for i in range(5)]:
        V.release(n)
    Zf = [V.alloc(f"Zf{i}", 4) for i in range(4)]
    for d in range(4):
        a(f"ds_read2_b32 {Zf[d][0:2]}, {zA} offset0:{16*d} offset1:{16*d+1}")
        a(f"ds_read2_b32 {Zf[d][2:4]}, {zA} offset0:{16*d+2} offset1:{16*d+3}")
    a("s_waitcnt vmcnt(0) lgkmcnt(0)")
    G.stamp(7)
    if G.o.get("kprio"): a(f"s_setprio {G.o['kprio']}")
    a(f"s_cmp_eq_u32 {sPART}, 0")
    a("s_barrier")
    G.dump_lds("ut")
    V.release("zA")
    a(f"s_cbranch_scc0 L_CONV1")
    conv(G, 0, A, Zf, box, bA, wA, exA, mi)
    G.stamp(8)
    a("s_branch L_FIN")
    a.label("L_CONV1")
    conv(G, 1, A, Zf, box, bA, wA, exA, mi)
    G.stamp(8)
```

```python
from gen3 import *


def silu_rb(G, out, x, tmp):
    a = G.a
    n = x.n
    a(f"s_mov_b32 {sX[0]}, {LOG2E | 0x80000000:#x}")
    for i in range(0, n, 2):
        a(f"v_pk_mul_f32 {tmp[i:i+2]}, {x[i:i+2]}, {Reg('s', sX[0].b, 2)} op_sel_hi:[1,0]")
    for i in range(n):
        a(f"v_exp_f32 {tmp[i]}, {tmp[i]}")
    for i in range(0, n, 2):
        a(f"v_pk_add_f32 {tmp[i:i+2]}, {tmp[i:i+2]}, 1.0 op_sel_hi:[1,0]")
    for i in range(n):
        a(f"v_rcp_f32 {tmp[i]}, {tmp[i]}")
    for i in range(0, n, 2):
        a(f"v_pk_mul_f32 {tmp[i:i+2]}, {tmp[i:i+2]}, {x[i:i+2]}")
    for i in range(n):
        a(f"v_cvt_pk_bf16_f32 {out[i]}, 0, {tmp[i]}")


def bc(i):
    return "op_sel_hi:[1,0]" if i == 0 else "op_sel:[0,1] op_sel_hi:[1,1]"


def spin(G, name, body, cond_ne):
    a = G.a
    a(f"s_mov_b32 {sSPIN}, {SPIN}")
    a.label(name)
    body()
    a(cond_ne)
    a(f"s_cbranch_vccz {name}_OK")
    a(f"s_sub_u32 {sSPIN}, {sSPIN}, 1")
    a(f"s_cbranch_scc0 {name}")
    a.label(name + "_OK")


def urole(G):
    a, V, o = G.a, G.V, G.o
    lane, l4, l16, X, W, r8, wa, z = G.lane, G.l4, G.l16, G.X, G.W, G.r8, G.wa, G.z
    xpos = int(o.get("xpos", "1"))
    a(f"s_setprio {o.get('uprio', '3')}")
    sTO, sH = S(18), S(19)
    ao = V.alloc("ao", 2); XR = [V.alloc(f"XR{i}", 4) for i in range(2)]
    t = V.alloc("ut"); t2 = V.alloc("ut2"); mi = V.alloc("mi"); one = V.alloc("one")
    a(f"s_lshr_b32 {sT[0]}, {sW}, 1")
    a(f"s_mul_i32 {sTO}, {sT[0]}, 3")
    a(f"s_xor_b32 {sTO}, {sTO}, {sPART}")
    a(f"s_and_b32 {sH}, {sW}, 1")
    a(f"s_lshl_b32 {sT[1]}, {sTO}, 1")
    a(f"s_add_u32 {sH}, {sH}, {sT[1]}")
    a(f"s_lshl_b32 {sT[1]}, {sH}, 17")
    a(f"s_lshl_b32 {sT[2]}, {sG}, 3")
    a(f"s_add_u32 {sT[1]}, {sT[1]}, {sT[2]}")
    a(f"v_lshl_add_u32 {ao[0]}, {lane}, 11, {sT[1]}")
    a(f"v_add_u32 {ao[1]}, 0x100000, {ao[0]}")
    def ldx():
        for i in range(2):
            for e in range(2):
                a(f"global_load_dwordx2 {XR[i][2*e:2*e+2]}, {ao[i]}, {pU} offset:{1024*e}")
    if xpos == 0: ldx()
    sw = V.alloc("sw"); sr = V.alloc("sr"); ts = V.alloc("ts", 2); pa = V.alloc("pa"); rowk = V.alloc("rowk")
    tg = V.alloc("ptg", 2); msk = V.alloc("msk")
    a(f"v_bfe_u32 {t}, v0, 4, 1")
    a(f"v_mul_u32_u24 {sw}, {UTC}, {t}")
    a(f"v_and_b32 {t}, 15, v0")
    a(f"s_movk_i32 {sT[0]}, 160")
    a(f"v_mad_u32_u24 {sw}, {t}, {sT[0]}, {sw}")
    a(f"v_and_b32 {t}, 8, v0")
    a(f"v_lshlrev_b32 {t2}, 2, {r8}")
    a(f"v_xor_b32 {t}, {t}, {t2}")
    a(f"v_lshl_add_u32 {sw}, {t}, 1, {sw}")
    a(f"v_add_u32 {sw}, {UT + 512}, {sw}")
    a(f"s_mul_i32 {sT[1]}, {sW}, {UTC}")
    a(f"s_add_u32 {sT[1]}, {sT[1]}, {UT}")
    a(f"v_lshl_add_u32 {t}, {lane}, 3, {sT[1]}")
    a(f"ds_write_b64 {t}, {z}")
    a(f"v_lshrrev_b32 {t}, 2, {lane}")
    a(f"v_and_b32 {t2}, 48, {l16}")
    a(f"v_mul_u32_u24 {sr}, 80, {t}")
    a(f"s_add_u32 {sT[1]}, {sT[1]}, 512")
    a(f"v_add3_u32 {sr}, {sr}, {t2}, {sT[1]}")
    a(f"s_lshl_b32 {sT[1]}, {sW}, 19")
    a(f"s_lshl_b32 {sT[2]}, {sP}, 6")
    a(f"s_add_u32 {sT[1]}, {sT[1]}, {sT[2]}")
    a(f"s_add_u32 {sT[1]}, {sT[1]}, {W_T}")
    a(f"v_lshl_add_u32 {ts[0]}, {t}, 14, {t2}")
    a(f"v_add_u32 {ts[0]}, {sT[1]}, {ts[0]}")
    a(f"v_xor_b32 {ts[1]}, 16, {ts[0]}")
    a(f"v_add_u32 {ts[1]}, 0x40000, {ts[1]}")
    a(f"s_lshl_b32 {sT[1]}, {sW}, 3")
    a(f"s_add_u32 {sT[1]}, {sT[1]}, {sT[2]}")
    a(f"s_add_u32 {sT[1]}, {sT[1]}, {W_CAND}")
    a(f"v_and_b32 {pa}, 32, {lane}")
    a(f"v_add_u32 {pa}, {sT[1]}, {pa}")
    a(f"s_lshl_b32 {sT[1]}, {sP}, 3")
    a(f"s_sub_u32 {sT[1]}, 0x7ff, {sT[1]}")
    a(f"v_sub_u32 {rowk}, {sT[1]}, {r8}")
    a(f"v_mov_b32 {mi}, {MISC}")
    a(f"v_mov_b32 {one}, 1")
    a(f"v_mov_b32 {msk}, {TM ^ 0xffffffff:#x}")
    a(f"v_mul_u32_u24 {t}, 3, {r8}")
    sONE, sLO, sHI, sMK, sL01 = sT[0], sT[1], sT[2], sT[3], sTP[2]
    a(f"s_mov_b32 {sONE}, 0x3f803f80")
    a(f"s_mov_b32 {sLO}, 0x3f80")
    a(f"s_mov_b32 {sHI}, 0x3f800000")
    a(f"s_mov_b32 {sMK}, 0xffff0000")
    a(f"s_mov_b32 {sL01[0]}, 1")
    a(f"s_mov_b32 {sL01[1]}, 1")
    a(f"s_mul_i32 {sTAG}, {sE}, {TMUL:#x}")
    a(f"s_add_u32 {sTAG}, {sTAG}, 0x7F4A7C15")
    kv = V.alloc("kv", 2)
    a(f"v_alignbit_b32 {tg[0]}, {sTAG}, {sTAG}, {t}")
    a(f"v_mov_b32 {kv[1]}, {sTAG}")
    a(f"v_lshrrev_b32 {tg[1]}, 8, {tg[0]}")
    a(f"v_and_b32 {tg[0]}, {TM:#x}, {tg[0]}")
    a(f"v_and_b32 {tg[1]}, {TM:#x}, {tg[1]}")
    s1 = V.alloc("s1"); q = V.alloc("q"); ws = V.alloc("ws"); negm = V.alloc("negm"); dl = V.alloc("dl")
    d = V.alloc("d", 16); s2 = V.alloc("s2", 2); rs = V.alloc("rs", 2); stw = V.alloc("stw")
    a.begin()
    for i in range(8):
        a(f"v_dot2_f32_bf16 {s1}, {X[i]}, {sONE}, {s1 if i else 0}")
        if i == 0: G.stamp(1)
    def gq():
        for i in range(8):
            a(f"v_dot2_f32_bf16 {q}, {X[i]}, {W[i]}, {q if i else 0}"); yield
        for i in range(8):
            a(f"v_dot2_f32_bf16 {ws}, {W[i]}, {sONE}, {ws if i else 0}"); yield
    fill = gq()
    def f(n):
        for _ in range(n): next(fill, None)
    f(3)
    for r in (8, 4, 2, 1):
        a(f"v_add_f32_dpp {s1}, {s1}, {s1} row_ror:{r} {DPPM}"); f(2)
    a(f"v_mov_b32 {t}, {s1}"); f(2)
    a(f"v_permlane16_swap_b32 {s1}, {t}")
    a(f"v_add_f32 {s1}, {s1}, {t}")
    a(f"v_mul_f32 {dl}, 0x3b000000, {s1}")
    a(f"v_cvt_pk_bf16_f32 {negm}, 0, -{dl}")
    f(16)
    for i in range(8):
        a(f"v_dot2_f32_bf16 {d[2*i]}, {X[i]}, {sLO}, {negm}")
        a(f"v_dot2_f32_bf16 {d[2*i+1]}, {X[i]}, {sHI}, {negm}")
    a(f"v_fma_f32 {q}, {negm}, {ws}, {q}")
    a(f"v_add_f32 {dl}, {dl}, {negm}")
    a(f"v_pk_mul_f32 {s2}, {d[0:2]}, {d[0:2]}")
    for i in range(1, 8):
        a(f"v_pk_fma_f32 {s2}, {d[2*i:2*i+2]}, {d[2*i:2*i+2]}, {s2}")
    a(f"v_add_f32 {s1}, {s2[0]}, {s2[1]}")
    def gr():
        for i in range(16):
            a(f"v_cvt_pk_bf16_f32 {d[i]}, 0, {d[i]}"); yield
    fill = gr()
    f(2)
    a(f"v_permlane16_swap_b32 {s1}, {q}")
    a(f"v_add_f32 {s1}, {s1}, {q}"); f(2)
    for r in (8, 4, 2, 1):
        a(f"v_add_f32_dpp {s1}, {s1}, {s1} row_ror:{r} {DPPM}"); f(2)
    a(f"v_mov_b32 {q}, {s1}"); f(2)
    a(f"v_permlane16_swap_b32 {s1}, {q}")
    a(f"v_mul_f32 {s1}, 0x3b000000, {s1}")
    a(f"v_fma_f32 {s1}, -{dl}, {dl}, {s1}")
    a(f"v_max_f32 {s1}, 0, {s1}")
    a(f"v_cvt_pk_bf16_f32 {s1}, 0, {s1}")
    a(f"v_add_f32 {s1}, 0x3727c5ac, {s1}")
    a(f"v_cvt_pk_bf16_f32 {s1}, 0, {s1}")
    a(f"v_sqrt_f32 {s1}, {s1}"); f(1)
    a(f"v_cvt_pk_bf16_f32 {rs[0]}, 0, {s1}")
    a(f"v_rcp_f32 {rs[0]}, {rs[0]}"); f(1)
    f(16)
    a(f"v_cvt_pk_bf16_f32 {stw}, {negm}, {s1}")
    def gx():
        for i in range(8):
            a(f"v_pk_mul_f32 {d[2*i:2*i+2]}, {d[2*i:2*i+2]}, {rs} op_sel_hi:[1,0]"); yield
            a(f"v_cvt_pk_bf16_f32 {d[2*i]}, 0, {d[2*i]}"); yield
            a(f"v_cvt_pk_bf16_f32 {d[2*i+1]}, 0, {d[2*i+1]}"); yield
            a(f"v_cvt_pk_f16_f32 {X[i]}, {d[2*i]}, {d[2*i+1]}"); yield
            a(f"v_and_or_b32 {X[i]}, {X[i]}, {msk}, {tg[i & 1]}"); yield
            if i & 1:
                a(f"ds_write_b64 {sw}, {X[i-1:i+1]} offset:{(i >> 2) * 2 * UTC + ((i >> 1) & 1) * 80}"); yield
    fill = gx()
    a(f"v_mul_f32 {q}, {q}, {rs[0]}")
    a(f"v_cvt_pk_bf16_f32 {q}, 0, {q}")
    a(f"v_ashrrev_i32 {t}, 31, {q}")
    a(f"v_or_b32 {t}, 0x80000000, {t}")
    a(f"v_xor_b32 {t}, {t}, {q}")
    a(f"v_bfi_b32 {t}, {sMK}, {t}, {rowk}"); f(2)
    a(f"v_permlane32_swap_b32 {t}, {stw}")
    a(f"v_cmp_gt_u32 vcc, {t}, {stw}"); f(1)
    a(f"s_mov_b32 vcc_hi, vcc_lo")
    a(f"v_cndmask_b32 {kv[0]}, {stw}, {t}, vcc")
    a(f"s_mov_b64 exec, {sL01}")
    a(f"global_store_dwordx2 {pa}, {kv}, {pWS} sc1")
    a(f"s_mov_b64 exec, -1")
    G.stamp(2)
    f(100)
    a.end(sched=False)
    G.lane0_add(mi, one, M_SCNT)
    G0, G1 = d[0:4], d[4:8]
    def body():
        a(f"ds_read_b32 {t}, {mi} offset:{M_SCNT}")
        a(f"ds_read_b128 {G0}, {sr}")
        a(f"ds_read_b128 {G1}, {sr} offset:1280")
    spin(G, "L_SC", body, f"v_cmp_gt_u32 vcc, 4, {t}")
    a(f"global_store_dwordx4 {ts[0]}, {G0}, {pWS} sc1")
    a(f"global_store_dwordx4 {ts[1]}, {G1}, {pWS} sc1")
    G.lane0_add(mi, one, M_SCNT)
    G.stamp(3)
    a(f"s_setprio {o.get('uprio2', '0')}")
    G.dump_lds("tab")
    if xpos == 1: ldx()
    V.release("s1", "q", "ws", "negm", "dl", "s2", "rs", "stw", "sw", "sr", "ts", "pa", "rowk", "ptg", "msk", "X", "W", "wa", "r8", "z")
    G.ffn_ids()
    wd = V.alloc("wd", 16); wda = V.alloc("wda", 2)
    a(f"s_lshl_b32 {sT[0]}, {sSIG}, 14")
    a(f"s_lshl_b32 {sT[1]}, {sW}, 8")
    a(f"s_add_u32 {sT[0]}, {sT[0]}, {sT[1]}")
    a(f"s_add_u32 {sT[0]}, {sT[0]}, 4096")
    a(f"v_add_u32 {wda[0]}, {sT[0]}, {l4}")
    a(f"v_add_u32 {wda[1]}, 0x2000, {wda[0]}")
    a(f"s_mov_b64 exec, {sFFN}")
    for fi in range(16):
        a(f"global_load_dword {wd[fi]}, {wda[fi >> 3]}, {pWD} offset:{(fi % 8 - 4) * 1024}")
    a(f"s_mov_b64 exec, -1")
    V.release("wda")
    ta = V.alloc("ta", 4); ca = V.alloc("ca", 2); ua = V.alloc("ua", 2); tg = V.alloc("tg", 4)
    cd = V.alloc("cd", 8); H = [V.alloc(f"H{i}", 4) for i in range(4)]; Hx = [V.alloc(f"Hx{i}", 4) for i in range(4)]
    a(f"s_lshl_b32 {sT[0]}, {sG}, 14")
    a(f"s_lshl_b32 {sT[1]}, {sH}, 10")
    a(f"s_add_u32 {sT[0]}, {sT[0]}, {sT[1]}")
    a(f"s_add_u32 {sT[0]}, {sT[0]}, {W_T}")
    a(f"v_add_u32 {ta[0]}, {sT[0]}, {l16}")
    a(f"v_add_u32 {ta[1]}, 0x2000, {ta[0]}")
    a(f"v_xor_b32 {ta[2]}, 0x800, {ta[0]}")
    a(f"v_xor_b32 {ta[3]}, 0x800, {ta[1]}")
    a(f"s_and_b32 {sT[0]}, {sW}, 2")
    a(f"s_lshl_b32 {sT[0]}, {sT[0]}, 11")
    a(f"s_and_b32 {sT[1]}, {sW}, 1")
    a(f"s_lshl_b32 {sT[1]}, {sT[1]}, 10")
    a(f"s_add_u32 {sT[0]}, {sT[0]}, {sT[1]}")
    a(f"s_add_u32 {sT[0]}, {sT[0]}, {W_CAND}")
    a(f"v_and_b32 {t}, 30, {lane}")
    a(f"v_lshl_add_u32 {t}, {t}, 5, {sT[0]}")
    a(f"v_and_b32 {t2}, 32, {lane}")
    a(f"v_lshl_add_u32 {t}, {t2}, 6, {t}")
    a(f"v_and_b32 {t2}, 16, {l16}")
    a(f"v_add_u32 {ca[0]}, {t}, {t2}")
    a(f"v_add_u32 {ca[1]}, 0x2000, {ca[0]}")
    a(f"s_lshl_b32 {sT[0]}, {sH}, 8")
    a(f"s_xor_b32 {sT[1]}, {sT[0]}, 512")
    a(f"s_add_u32 {sT[0]}, {sT[0]}, {UT}")
    a(f"s_add_u32 {sT[1]}, {sT[1]}, {UT}")
    a(f"v_add_u32 {ua[0]}, {sT[0]}, {l4}")
    a(f"v_add_u32 {ua[1]}, {sT[1]}, {l4}")
    a(f"v_and_b32 {t}, 3, {lane}")
    a(f"v_mul_u32_u24 {t}, 6, {t}")
    a(f"v_alignbit_b32 {t}, {sTAG}, {sTAG}, {t}")
    for k, sh in enumerate((0, 8, 3, 11)):
        if sh:
            a(f"v_alignbit_b32 {tg[k]}, {t}, {t}, {sh}")
            a(f"v_and_b32 {tg[k]}, {TM:#x}, {tg[k]}")
        else:
            a(f"v_and_b32 {tg[k]}, {TM:#x}, {t}")
    a(f"s_lshl_b32 {sD[0]}, {sDSK[0]}, 16")
    a(f"s_and_b32 {sD[1]}, {sDSK[0]}, 0xffff0000")
    a(f"s_lshl_b32 {sD[2]}, {sDSK[1]}, 16")
    a(f"s_and_b32 {sD[3]}, {sDSK[1]}, 0xffff0000")
    spin(G, "L_S8", lambda: a(f"ds_read_b32 {t}, {mi} offset:{M_SCNT}"), f"v_cmp_gt_u32 vcc, 8, {t}")
    V.release("d")
    def ldC():
        for k in range(2):
            a(f"global_load_dwordx4 {cd[4*k:4*k+4]}, {ca[k]}, {pWS} sc1")
    def ldT(i):
        a(f"global_load_dwordx4 {H[i]}, {ta[i]}, {pWS} sc1")
    tw = o.get("tw", "1")
    if tw == "1": a(f"s_waitcnt vmcnt({16 + (4 if xpos == 1 else 0)})")
    G.stamp(9)
    ldC()
    for i in (0, 2, 1, 3): ldT(i)
    xr = V.alloc("xr"); st = V.alloc("st", 2); sta = V.alloc("sta"); chk = V.alloc("chk"); cq = V.alloc("cq", 8)
    sSL, sSH, sTM = sT[6], sT[7], sT[8]
    a(f"s_mov_b32 {sSL}, 0x05040100")
    a(f"s_mov_b32 {sSH}, 0x07060302")
    a(f"s_mov_b32 {sTM}, {TM:#x}")
    a(f"s_mov_b32 {sDONE}, 0")
    sSP2 = S(63)
    a(f"s_mov_b32 {sSP2}, {SPIN}")
    a.label("L_LOOP")
    a(f"v_xor_b32 {t}, {sTAG}, {cd[1]}")
    for k in (3, 5, 7):
        a(f"v_bitop3_b32 {t}, {t}, {cd[k]}, {sTAG} bitop3:0xf6")
    a(f"v_cmp_ne_u32 vcc, 0, {t}")
    a(f"s_cbranch_vccnz L_RETRY")
    G.stamp(4)
    a(f"v_max3_u32 {t}, {cd[0]}, {cd[2]}, {cd[4]}")
    a(f"v_max_u32 {t}, {t}, {cd[6]}")
    G.reduce(t, "v_max_u32")
    a(f"s_mov_b32 exec_lo, 0")
    a(f"s_mov_b32 exec_hi, 0x80000000")
    a(f"ds_max_u32 {mi}, {t} offset:{M_KEY}")
    a(f"ds_add_u32 {mi}, {one} offset:{M_CCNT}")
    a(f"s_mov_b64 exec, -1")
    a(f"s_mov_b32 {sDONE}, 1")
    def body():
        a(f"ds_read_b32 {t}, {mi} offset:{M_CCNT}")
        a(f"ds_read_b32 {t2}, {mi} offset:{M_KEY}")
    spin(G, "L_CC", body, f"v_cmp_gt_u32 vcc, 4, {t}")
    a(f"v_readfirstlane_b32 {sT[0]}, {t2}")
    a(f"s_andn2_b32 {sIDX}, 0x7ff, {sT[0]}")
    a(f"s_lshl_b32 {sT[2]}, {sIDX}, 10")
    a(f"s_lshl_b32 {sT[1]}, {sW}, 8")
    a(f"s_add_u32 {sT[2]}, {sT[2]}, {sT[1]}")
    a(f"v_add_u32 {t}, {sT[2]}, {l4}")
    a(f"s_and_b32 {sT[2]}, {sIDX}, 0x7f8")
    a(f"s_lshl_b32 {sT[2]}, {sT[2]}, 3")
    a(f"s_and_b32 {sT[1]}, {sIDX}, 6")
    a(f"s_lshl_b32 {sT[1]}, {sT[1]}, 2")
    a(f"s_add_u32 {sT[2]}, {sT[2]}, {sT[1]}")
    a(f"s_add_u32 {sT[2]}, {sT[2]}, {W_CAND + 32}")
    a(f"v_mov_b32 {sta}, {sT[2]}")
    a(f"s_mov_b64 exec, {sFFN}")
    a(f"global_load_dword {xr}, {t}, {pU}")
    a(f"global_load_dwordx2 {st}, {sta}, {pWS} sc1")
    a(f"s_mov_b64 exec, -1")
    if xpos == 2: ldx()
    a(f"s_ashr_i32 {sT[1]}, {sT[0]}, 31")
    a(f"s_not_b32 {sT[1]}, {sT[1]}")
    a(f"s_or_b32 {sT[1]}, {sT[1]}, 0x80000000")
    a(f"s_xor_b32 {sT[0]}, {sT[0]}, {sT[1]}")
    a(f"s_and_b32 {sRB}, {sT[0]}, 0xffff0000")
    a.label("L_TCHK")
    for n, i in enumerate((0, 2, 1, 3)):
        for k in range(4):
            a(f"v_xor_b32 {Hx[i][k]}, {H[i][k]}, {tg[k]}")
        u = i >> 1; e = i & 1
        for c in range(4):
            a(f"v_perm_b32 {cq[2*c+e] if u == 0 else cd[2*c+e]}, {Hx[i][2 + (c >> 1)]}, {Hx[i][c >> 1]}, {sSH if c & 1 else sSL}")
            if e == 1:
                r = cq if u == 0 else cd
                a(f"ds_write2st64_b32 {ua[u]}, {r[2*c]}, {r[2*c+1]} offset0:{18*c+2} offset1:{18*c+10}")
        if n == 0:
            a(f"v_or3_b32 {chk}, {Hx[i][0]}, {Hx[i][1]}, {Hx[i][2]}")
            a(f"v_or_b32 {chk}, {chk}, {Hx[i][3]}")
        else:
            a(f"v_or3_b32 {chk}, {chk}, {Hx[i][0]}, {Hx[i][1]}")
            a(f"v_or3_b32 {chk}, {chk}, {Hx[i][2]}, {Hx[i][3]}")
    a(f"v_and_b32 {chk}, {sTM}, {chk}")
    a(f"v_cmp_ne_u32 vcc, 0, {chk}")
    a(f"s_cbranch_vccz L_TOK")
    a.label("L_RETRY")
    a(f"s_sub_u32 {sSP2}, {sSP2}, 1")
    a(f"s_cbranch_scc1 L_FIN")
    a(f"s_cmp_eq_u32 {sDONE}, 0")
    a(f"s_cselect_b64 exec, -1, 0")
    for k in range(2):
        a(f"global_load_dwordx4 {cd[4*k:4*k+4]}, {ca[k]}, {pWS} sc1").nowait = True
    a(f"s_mov_b64 exec, -1")
    for i in (0, 2, 1, 3):
        a(f"v_xor_b32 {chk}, {H[i][0]}, {tg[0]}")
        for k in range(1, 4):
            a(f"v_bitop3_b32 {chk}, {chk}, {H[i][k]}, {tg[k]} bitop3:0xf6")
        a(f"v_and_b32 {chk}, {sTM}, {chk}")
        a(f"v_cmp_ne_u32 vcc, 0, {chk}")
        a(f"s_cmp_lg_u64 vcc, 0")
        a(f"s_cselect_b64 exec, -1, 0")
        ldT(i)
        a(f"s_mov_b64 exec, -1")
    a(f"s_cmp_eq_u32 {sDONE}, 0")
    a(f"s_cbranch_scc1 L_LOOP")
    a(f"s_waitcnt vmcnt(0)")
    a(f"s_branch L_TCHK")
    a.label("L_TOK")
    a("s_waitcnt lgkmcnt(0)")
    G.stamp(5)
    a("s_barrier")
    G.dump_lds("ut")
    if o.get("uprio3"): a(f"s_setprio {o['uprio3']}")
    if xpos == 3: ldx()
    V.release("ta", "ca", "ua", "tg", "cq", "chk", "cd", "H0", "H1", "H2", "H3", "Hx2", "Hx3")
    inv = V.alloc("inv", 4); ea = V.alloc("ea")
    xn = [V.alloc(f"xn{i}", 8) for i in range(2)]
    xf = [V.alloc(f"xf{i}", 8) for i in range(2)]
    e1 = [V.alloc(f"e1{i}", 8) for i in range(2)]
    gg = [V.alloc(f"gg{i}", 8) for i in range(2)]
    def pre(i):
        a.begin()
        for c in range(4):
            for e in range(2):
                src = Hx[i][2*e + (c >> 1)]
                if c & 1:
                    a(f"v_cvt_f32_f16_sdwa {xn[i][2*c+e]}, {src} dst_sel:DWORD dst_unused:UNUSED_PAD src0_sel:WORD_1")
                else:
                    a(f"v_cvt_f32_f16 {xn[i][2*c+e]}, {src}")
        for c in range(4):
            a(f"v_pk_mul_f32 {e1[i][2*c:2*c+2]}, {xn[i][2*c:2*c+2]}, {sD[(c & 2):(c & 2)+2]} {bc(c & 1)}")
        for k in range(8):
            a(f"v_cvt_pk_bf16_f32 {e1[i][k]}, 0, {e1[i][k]}")
        silu_rb(G, gg[i], xn[i], gg[i])
        a.end()
    a(f"ds_read_b128 {inv}, {mi} offset:{M_INV}")
    a(f"s_cmp_eq_u64 {sFFN}, 0")
    a(f"s_cbranch_scc1 L_NOFFN")
    ffn(G, wd, xr, st, sta, t, mi, one, lambda: pre(0) if o.get("fpre", "1") == "1" else None)
    if o.get("fpre", "1") == "1":
        a("s_branch L_PRE1")
    a.label("L_NOFFN")
    pre(0)
    a.label("L_PRE1")
    G.stamp(10)
    V.release("wd", "xr", "st", "sta")
    a(f"s_or_b32 {sT[0]}, s2, {sW}")
    a(f"s_cmp_eq_u32 {sT[0]}, 0")
    a(f"s_cselect_b64 exec, 1, 0")
    a(f"s_add_u32 {sT[1]}, {sE}, 1")
    a(f"v_mov_b32 {t}, 0")
    a(f"v_mov_b32 {t2}, {sT[1]}")
    a(f"global_store_dword {t}, {t2}, {pWS} sc1")
    a(f"s_mov_b64 exec, -1")
    a(f"s_lshr_b32 {sT[0]}, {sW}, 1")
    a(f"s_lshl_b32 {sT[1]}, {sT[0]}, 12")
    a(f"s_and_b32 {sT[2]}, {sW}, 1")
    a(f"s_lshl_b32 {sT[2]}, {sT[2]}, 9")
    a(f"s_add_u32 {sT[1]}, {sT[1]}, {sT[2]}")
    a(f"s_add_u32 {sT[1]}, {sT[1]}, {EX}")
    a(f"v_lshl_add_u32 {ea}, {lane}, 3, {sT[1]}")
    a(f"s_lshl_b32 {sT[0]}, {sT[0]}, 4")
    a(f"v_add_u32 {mi}, {sT[0]}, {mi}")
    sOM, sOWK, sPAR = S(44, 2), S(71), S(68, 2)
    a(f"s_bfe_u32 {sT[0]}, {sIDX}, 0x60001")
    a(f"s_lshl_b64 {sOM}, 1, {sT[0]}")
    a(f"s_lshr_b32 {sOWK}, {sIDX}, 7")
    a(f"s_sub_u32 {sOWK}, {sOWK}, {sH}")
    a(f"s_bitcmp1_b32 {sIDX}, 0")
    a(f"s_cselect_b64 {sPAR}, -1, 0")
    a(f"s_and_b64 {sTP[1]}, {sOM}, {sPAR}")
    a(f"s_andn2_b64 {sTP[0]}, {sOM}, {sPAR}")
    for i in range(2):
        a(f"s_cmp_eq_u32 {sOWK}, {8*i}")
        a(f"s_cselect_b64 {sM[2*i]}, {sTP[0]}, 0")
        a(f"s_cselect_b64 {sM[2*i+1]}, {sTP[1]}, 0")
    pp = V.alloc("pp", 8); cn = V.alloc("cn"); sav = V.alloc("sav", 14); qq = [V.alloc(f"qq{i}", 4) for i in range(3)]
    ga = V.alloc("ga")
    a(f"v_mov_b32 {sav[12]}, {ao[0]}")
    a(f"s_mul_i32 {sT[0]}, {sG}, {W_FG}")
    a(f"s_add_u32 {sT[0]}, {sT[0]}, {W_FFN}")
    a(f"v_add_u32 {ga}, {sT[0]}, {l16}")
    a(f"v_mov_b32 {qq[2][0]}, 0")
    a(f"v_mov_b32 {qq[2][1]}, {sTAG}")
    a(f"v_mov_b32 {qq[2][2]}, 0")
    a(f"v_mov_b32 {qq[2][3]}, {sTAG}")
    def gather():
        a(f"global_load_dwordx4 {qq[0]}, {ga}, {pWS} sc1")
        a(f"global_load_dwordx4 {qq[1]}, {ga}, {pWS} offset:1024 sc1")
        a(f"s_mov_b32 exec_hi, 0xfff")
        a(f"global_load_dwordx4 {qq[2]}, {ga}, {pWS} offset:2048 sc1")
        a(f"s_mov_b32 exec_hi, -1")
    def unx(i):
        for c in range(4):
            for e in range(2):
                src = XR[i][2*e + (c >> 1)]
                if c & 1:
                    a(f"v_and_b32 {xf[i][2*c+e]}, 0xffff0000, {src}")
                else:
                    a(f"v_lshlrev_b32 {xf[i][2*c+e]}, 16, {src}")
    for i in range(2):
        if i == 1:
            pre(1)
        unx(i)
        def body():
            a(f"ds_read_b32 {cn}, {mi} offset:{M_EXC + 32*i}")
            for c in range(4):
                a(f"ds_read_b64 {pp[2*c:2*c+2]}, {ea} offset:{i*8192 + c*1024}")
        spin(G, f"L_EX{i}", body, f"v_cmp_ne_u32 vcc, 4, {cn}")
        a.begin()
        for k in range(8):
            a(f"v_cvt_pk_bf16_f32 {pp[k]}, 0, {pp[k]}")
        for c in range(4):
            sel = "op_sel_hi:[1,0,1]" if (c & 1) == 0 else "op_sel:[0,1,0] op_sel_hi:[1,1,1]"
            a(f"v_pk_fma_f32 {pp[2*c:2*c+2]}, {pp[2*c:2*c+2]}, {inv[(c & 2):(c & 2)+2]}, {e1[i][2*c:2*c+2]} {sel}")
        for k in range(8):
            a(f"v_cvt_pk_bf16_f32 {e1[i][k]}, 0, {pp[k]}")
        for c in range(4):
            a(f"v_pk_mul_f32 {pp[2*c:2*c+2]}, {e1[i][2*c:2*c+2]}, {gg[i][2*c:2*c+2]}")
        for k in range(8):
            a(f"v_cvt_pk_bf16_f32 {pp[k]}, 0, {pp[k]}")
        for c in range(4):
            a(f"v_pk_add_f32 {pp[2*c:2*c+2]}, {pp[2*c:2*c+2]}, {xf[i][2*c:2*c+2]}")
        for e in range(2):
            a(f"v_cvt_pk_bf16_f32 {gg[i][2*e]}, {pp[e]}, {pp[2+e]}")
            a(f"v_cvt_pk_bf16_f32 {gg[i][2*e+1]}, {pp[4+e]}, {pp[6+e]}")
            a(f"s_andn2_b64 exec, -1, {sM[2*i+e]}")
            a(f"global_store_dwordx2 {ao[i]}, {gg[i][2*e:2*e+2]}, {pOUT} offset:{1024*e}")
            a(f"s_mov_b64 exec, -1")
        a.end()
        a(f"s_cmp_eq_u32 {sOWK}, {8*i}")
        a(f"s_cbranch_scc0 L_NS{i}")
        a(f"s_mov_b64 vcc, {sPAR}")
        for c in range(4):
            a(f"v_cndmask_b32 {sav[c]}, {e1[i][2*c]}, {e1[i][2*c+1]}, vcc")
            a(f"v_cndmask_b32 {sav[4+c]}, {xf[i][2*c]}, {xf[i][2*c+1]}, vcc")
            a(f"v_cndmask_b32 {sav[8+c]}, {xn[i][2*c]}, {xn[i][2*c+1]}, vcc")
        a(f"s_and_b32 {sT[0]}, {sPAR[0]}, 1024")
        a(f"v_add_u32 {sav[12]}, {sT[0]}, {ao[i]}")
        a.label(f"L_NS{i}")
        G.stamp(6 + i)
    a(f"s_and_b32 {sT[0]}, {sOWK}, -9")
    a(f"s_cmp_eq_u32 {sT[0]}, 0")
    a(f"s_cbranch_scc0 L_FIN")
    q = qq
    rs = pp
    a(f"s_mov_b32 {sSPIN}, {SPIN}")
    a.label("L_GA")
    gather()
    a(f"v_mov_b32 {rs[0]}, {sRB}")
    a(f"v_mul_f32 {rs[0]}, {LOG2E | 0x80000000:#x}, {rs[0]}")
    a(f"v_exp_f32 {rs[0]}, {rs[0]}")
    a(f"v_add_f32 {rs[0]}, 1.0, {rs[0]}")
    a(f"v_rcp_f32 {rs[0]}, {rs[0]}")
    a(f"v_cvt_pk_bf16_f32 {rs[0]}, 0, {rs[0]}")
    tags = [q[0][1], q[0][3], q[1][1], q[1][3], q[2][1], q[2][3]]
    a(f"v_xor_b32 {cn}, {sTAG}, {tags[0]}")
    for tt in tags[1:]:
        a(f"v_bitop3_b32 {cn}, {cn}, {tt}, {sTAG} bitop3:0xf6")
    a(f"v_cmp_ne_u32 vcc, 0, {cn}")
    a(f"s_cbranch_vccz L_GA_OK")
    a(f"s_sub_u32 {sSPIN}, {sSPIN}, 1")
    a(f"s_cbranch_scc0 L_GA")
    a.label("L_GA_OK")
    G.stamp(8)
    y0, y1 = q[0][0], q[0][2]
    a(f"v_add_f32 {y0}, {y0}, {q[1][0]}")
    a(f"v_add_f32 {y1}, {y1}, {q[1][2]}")
    a(f"v_add_f32 {y0}, {y0}, {q[2][0]}")
    a(f"v_add_f32 {y1}, {y1}, {q[2][2]}")
    a(f"v_permlane32_swap_b32 {y0}, {y1}")
    a(f"v_add_f32 {y0}, {y0}, {y1}")
    a(f"v_mov_b32 {y1}, {y0}")
    a(f"v_permlane16_swap_b32 {y0}, {y1}")
    a(f"v_add_f32 {y0}, {y0}, {y1}")
    for r in (2, 4, 8):
        a(f"v_add_f32_dpp {y0}, {y0}, {y0} row_ror:{r} {DPPM}")
    a(f"v_cvt_pk_bf16_f32 {y0}, 0, {y0}")
    a(f"v_mul_f32 {y0}, {y0}, {rs[0]}")
    a(f"v_cvt_pk_bf16_f32 {y0}, 0, {y0}")
    for k, ln in enumerate((0, 32, 1, 33)):
        a(f"v_readlane_b32 {sT[k]}, {y0}, {ln}")
    B = gg[0][0:4]; g2 = gg[0][4:8]
    for k in (0, 2):
        a(f"v_pk_add_f32 {B[k:k+2]}, {sav[8+k:10+k]}, {sTP[k//2]}")
    for k in range(4):
        a(f"v_cvt_pk_bf16_f32 {B[k]}, 0, {B[k]}")
    silu_rb(G, g2, B, g2)
    for k in (0, 2):
        a(f"v_pk_mul_f32 {g2[k:k+2]}, {g2[k:k+2]}, {sav[k:k+2]}")
    for k in range(4):
        a(f"v_cvt_pk_bf16_f32 {g2[k]}, 0, {g2[k]}")
    for k in (0, 2):
        a(f"v_pk_add_f32 {g2[k:k+2]}, {g2[k:k+2]}, {sav[4+k:6+k]}")
    a(f"v_cvt_pk_bf16_f32 {B[0]}, {g2[0]}, {g2[1]}")
    a(f"v_cvt_pk_bf16_f32 {B[1]}, {g2[2]}, {g2[3]}")
    a(f"s_mov_b64 exec, {sOM}")
    a(f"global_store_dwordx2 {sav[12]}, {B[0:2]}, {pOUT}")


def ffn(G, wd, xr, st, sta, t, mi, one, shadow):
    a, V = G.a, G.V
    lane, l4, l16 = G.lane, G.l4, G.l16
    snap = V.snapshot()
    xs = V.alloc("xs", 2); a15 = V.alloc("a15"); g4 = V.alloc("g4")
    a(f"v_and_b32 {a15}, 15, {lane}")
    a(f"v_lshrrev_b32 {g4}, 4, {lane}")
    a(f"s_lshl_b32 {sT[1]}, {sC}, 8")
    ta = V.alloc("ta"); Bg = V.alloc("Bg", 32); xa = V.alloc("xa"); xw = V.alloc("xw")
    a(f"v_lshrrev_b32 {ta}, 2, {a15}")
    a(f"v_lshl_add_u32 {ta}, {g4}, 3, {ta}")
    a(f"v_lshlrev_b32 {ta}, 5, {ta}")
    a(f"v_and_b32 {xa}, 3, {lane}")
    a(f"v_lshl_add_u32 {ta}, {xa}, 3, {ta}")
    a(f"s_lshl_b32 {sT[0]}, {sC}, 13")
    a(f"s_add_u32 {sT[0]}, {sT[0]}, {GU}")
    a(f"v_add_u32 {ta}, {sT[0]}, {ta}")
    for m in range(2):
        for s in range(4):
            for hh in range(2):
                r = Bg[16*m + 4*s + 2*hh: 16*m + 4*s + 2*hh + 2]
                a(f"ds_read_b64_tr_b16 {r}, {ta} offset:{4096*m + 1024*s + 128*hh}")
    a(f"s_add_u32 {sT[1]}, {sT[1]}, {XS}")
    a(f"v_add_u32 {xw}, {sT[1]}, {l4}")
    a(f"v_lshl_add_u32 {xa}, {g4}, 4, {sT[1]}")
    wp = V.alloc("wp", 16)
    a(f"s_mov_b32 {sT[2]}, 0x05040100")
    a(f"s_mov_b32 {sT[3]}, 0x07060302")
    for i in range(8):
        a(f"v_perm_b32 {wp[i]}, {wd[2*i+1]}, {wd[2*i]}, {sT[2]}")
        a(f"v_perm_b32 {wp[8+i]}, {wd[2*i+1]}, {wd[2*i]}, {sT[3]}")
    fa = V.alloc("fa"); pa = V.alloc("pa")
    a(f"v_lshlrev_b32 {fa}, 4, {a15}")
    a(f"v_add_u32 {fa}, {MISC + M_FP}, {fa}")
    a(f"s_lshl_b32 {sT[2]}, {sC}, 2")
    a(f"v_add_u32 {pa}, {sT[2]}, {fa}")
    oa = V.alloc("oa")
    a(f"v_lshrrev_b32 {oa}, 1, {lane}")
    a(f"s_lshl_b32 {sT[2]}, {sC}, 5")
    a(f"v_add_u32 {oa}, {sT[2]}, {oa}")
    a(f"v_mul_u32_u24 {oa}, {W_FG}, {oa}")
    a(f"v_and_b32 {t}, 16, {l16}")
    a(f"s_lshl_b32 {sT[2]}, {sSIG}, 5")
    a(f"s_add_u32 {sT[2]}, {sT[2]}, {W_FFN}")
    a(f"v_add3_u32 {oa}, {oa}, {t}, {sT[2]}")
    shadow()
    a(f"s_mov_b32 {sSPIN}, {SPIN}")
    a("s_branch L_FS_CHK")
    a.label("L_FS_RETRY")
    a(f"global_load_dwordx2 {st}, {sta}, {pWS} sc1")
    a.label("L_FS_CHK")
    a(f"v_cmp_ne_u32 vcc, {sTAG}, {st[1]}")
    a(f"s_cbranch_vccz L_FS_OK")
    a(f"s_sub_u32 {sSPIN}, {sSPIN}, 1")
    a(f"s_cbranch_scc0 L_FS_RETRY")
    a.label("L_FS_OK")
    a(f"v_and_b32 {st[1]}, 0xffff0000, {st[0]}")
    a(f"v_lshlrev_b32 {st[0]}, 16, {st[0]}")
    a(f"v_rcp_f32 {st[1]}, {st[1]}")
    a(f"v_lshlrev_b32 {xs[0]}, 16, {xr}")
    a(f"v_and_b32 {xs[1]}, 0xffff0000, {xr}")
    a(f"v_pk_add_f32 {xs}, {xs}, {st} op_sel_hi:[1,0]")
    a(f"v_cvt_pk_bf16_f32 {xs[0]}, 0, {xs[0]}")
    a(f"v_cvt_pk_bf16_f32 {xs[1]}, 0, {xs[1]}")
    a(f"v_pk_mul_f32 {xs}, {xs}, {st} op_sel:[0,1] op_sel_hi:[1,1]")
    a(f"v_cvt_pk_bf16_f32 {xr}, {xs[0]}, {xs[1]}")
    a(f"ds_write_b32 {xw}, {xr}")
    Ax = wd; dg = V.alloc("dg", 4); du = V.alloc("du", 4)
    for s in range(4):
        a(f"ds_read_b128 {Ax[4*s:4*s+4]}, {xa} offset:{64*s}")
    for s in range(4):
        a(f"v_mfma_f32_16x16x32_bf16 {dg}, {Ax[4*s:4*s+4]}, {Bg[4*s:4*s+4]}, {dg if s else 0}")
        a(f"v_mfma_f32_16x16x32_bf16 {du}, {Ax[4*s:4*s+4]}, {Bg[16+4*s:20+4*s]}, {du if s else 0}")
    a(f"s_mov_b64 exec, 0xffff")
    a(f"ds_write_b32 {pa}, {dg[0]}")
    a(f"ds_write_b32 {pa}, {du[0]} offset:256")
    G.lane0_add(mi, one, M_FCNT)
    def body():
        a(f"ds_read_b32 {t}, {mi} offset:{M_FCNT}")
        a(f"ds_read_b128 {dg}, {fa}")
        a(f"ds_read_b128 {du}, {fa} offset:256")
    spin(G, "L_FC", body, f"v_cmp_ne_u32 vcc, 4, {t}")
    a(f"v_pk_add_f32 {dg[0:2]}, {dg[0:2]}, {dg[2:4]}")
    a(f"v_pk_add_f32 {du[0:2]}, {du[0:2]}, {du[2:4]}")
    a(f"v_add_f32 {dg[0]}, {dg[0]}, {dg[1]}")
    a(f"v_add_f32 {du[0]}, {du[0]}, {du[1]}")
    a(f"v_cvt_pk_bf16_f32 {dg[0]}, 0, {dg[0]}")
    a(f"v_cvt_pk_bf16_f32 {du[0]}, 0, {du[0]}")
    a(f"v_mul_f32 {dg[1]}, {LOG2E | 0x80000000:#x}, {dg[0]}")
    a(f"v_exp_f32 {dg[1]}, {dg[1]}")
    a(f"v_add_f32 {dg[1]}, 1.0, {dg[1]}")
    a(f"v_rcp_f32 {dg[1]}, {dg[1]}")
    a(f"v_mul_f32 {dg[0]}, {dg[0]}, {dg[1]}")
    a(f"v_cvt_pk_bf16_f32 {dg[0]}, 0, {dg[0]}")
    a(f"v_mul_f32 {dg[0]}, {dg[0]}, {du[0]}")
    a(f"v_mov_b32_dpp {dg[1]}, {dg[0]} quad_perm:[1,0,3,2] {DPPM}")
    a(f"v_cvt_pk_bf16_f32 {dg[0]}, {dg[0]}, {dg[1]}")
    for i in range(8):
        a(f"v_readlane_b32 {sT[i]}, {dg[0]}, {2*i}")
    y = Ax[0:4]
    a(f"v_mov_b32 {y[1]}, {sTAG}")
    a(f"v_mov_b32 {y[3]}, {sTAG}")
    for i in range(8):
        a(f"v_dot2_f32_bf16 {y[0]}, {wp[i]}, {sT[i]}, {y[0] if i else 0}")
        a(f"v_dot2_f32_bf16 {y[2]}, {wp[8+i]}, {sT[i]}, {y[2] if i else 0}")
    a(f"global_store_dwordx4 {oa}, {y}, {pWS} sc1")
    V.restore(snap)
```

```python
import sys, os
sys.path.insert(0, os.path.dirname(__file__))
from asmlib import Asm, Regs, Reg

NAME = "recurrent_scan__ssm_conv_s4d__moe_arch_mod__prompt"
REF = f"cdna_kernels/{NAME}.s.ref"

TABC, ROWS = 27984, 528
UT, UTC = 111936, 4608
EX, XS = 8192, 24576
ZOFF = 4288
GU = 130368
MISC = 163136
M_KEY, M_SCNT, M_EXC, M_FCNT, M_CCNT, M_INV, M_FP = 0, 16, 32, 96, 112, 128, 192
LDS = 163840
assert MISC + M_FP + 512 <= LDS and GU + 32768 == MISC and UT + 4 * UTC == GU and 4 * TABC == UT
W_FFN, W_FG = 24576, 3072
W_CAND = 1 << 20
W_T = 4 << 20
TM = 0x00070007
W_DUMP = 128 << 20
W_TS = 64 << 20
SPIN = 1 << 16
LOG2E = 0x3fb8aa3b
INV2PI = 0x3e22f983
TMUL = 0x9E3779B1
for r in range(0, 24, 3):
    ok = False
    for q in (0, 8, 16, 24):
        b = (r + q) % 32
        if b + 2 < 32 and ((TMUL >> b) & 7) not in (0, 7): ok = True
    assert ok

S = lambda a, n=1: Reg("s", a, n)
pU, pLA, pAI, pCR, pCI, pLDT, pDSK = S(4, 2), S(6, 2), S(8, 2), S(10, 2), S(12, 2), S(14, 2), S(16, 2)
pWR, pWG, pWU, pWD, pOUT, pDBG, pWS = S(20, 2), S(22, 2), S(24, 2), S(26, 2), S(28, 2), S(30, 2), S(32, 2)
sLDT, sDSK = S(34, 2), S(36, 2)
sE, sTAG, sW, sC, sG, sPART, sJ = S(38), S(39), S(40), S(41), S(42), S(43), S(44)
sP, sDONE, sSIG, sFFN = S(45), S(46), S(47), S(48, 2)
sT = [S(50 + i) for i in range(10)]
sTP = [S(50 + 2 * i, 2) for i in range(5)]
sIDX, sRB, sSPIN = S(60), S(61), S(62)
sD = S(64, 4)
sTS = S(72, 24)
sX = [S(96 + i) for i in range(4)]
sM = [S(6, 2), S(8, 2), S(10, 2), S(12, 2)]
OWN = {0: [0, 3, 4, 7], 1: [1, 2, 5, 6]}
DPPM = "row_mask:0xf bank_mask:0xf"


class Gen:
    def __init__(self, dump=None, ts=False, opts=None):
        self.a = Asm()
        self.dump = dump
        self.ts = ts
        self.o = opts or {}
        self.V = Regs("v", 1, 256)

    def stamp(self, i, pin=False):
        if self.ts:
            self.a(f"{'s_memtime' if self.o.get('cyc') else 's_memrealtime'} {sTS[2*i:2*i+2]}").pin = pin

    def reduce(self, v, op="v_add_f32"):
        a = self.a
        for m in ("row_shr:1 row_mask:0xf", "row_shr:2 row_mask:0xf", "row_shr:4 row_mask:0xf", "row_shr:8 row_mask:0xf",
                  "row_bcast:15 row_mask:0xa", "row_bcast:31 row_mask:0xc"):
            a(f"{op}_dpp {v}, {v}, {v} {m} bank_mask:0xf")

    def cmul(self, r, x, y):
        a = self.a
        a(f"v_pk_mul_f32 {r}, {x}, {y} op_sel_hi:[1,0]")
        a(f"v_pk_fma_f32 {r}, {x}, {y}, {r} op_sel:[1,1,0] op_sel_hi:[0,1,1] neg_lo:[1,0,0]")

    def lane0_add(self, mi, one, off):
        a = self.a
        a("s_mov_b64 exec, 1")
        a(f"ds_add_u32 {mi}, {one} offset:{off}")
        a("s_mov_b64 exec, -1")

    def ffn_ids(self):
        a = self.a
        a(f"s_lshr_b32 {sT[0]}, {sJ}, 1")
        a(f"s_lshr_b32 {sT[1]}, {sT[0]}, 2")
        a(f"s_lshl_b32 {sT[1]}, {sT[1]}, 3")
        a(f"s_and_b32 {sT[2]}, s2, 7")
        a(f"s_add_u32 {sT[1]}, {sT[1]}, {sT[2]}")
        a(f"s_lshl_b32 {sT[1]}, {sT[1]}, 2")
        a(f"s_and_b32 {sT[0]}, {sT[0]}, 3")
        a(f"s_add_u32 {sSIG}, {sT[1]}, {sT[0]}")
        a(f"s_cmp_eq_u32 {sPART}, 1")
        a(f"s_cselect_b32 {sSIG}, {sSIG}, 127")
        a(f"s_cmp_lt_u32 {sSIG}, 86")
        a(f"s_cselect_b64 {sFFN}, -1, 0")
        a(f"s_cselect_b32 {sSIG}, {sSIG}, 0")

    def prologue(self):
        a, V = self.a, self.V
        self.stamp(0)
        a("s_cmp_ge_u32 s2, 0x100")
        a("s_cbranch_scc1 L_EXIT")
        a("s_load_dwordx16 s[4:19], s[0:1], 0")
        a("s_load_dwordx2 s[32:33], s[0:1], 112")
        a("s_load_dwordx8 s[20:27], s[0:1], 64")
        a("s_load_dwordx4 s[28:31], s[0:1], 96")
        pf = V.alloc("pf")
        self.X = X = V.alloc("X", 8); self.W = W = V.alloc("W", 8)
        self.wa = wa = V.alloc("wa"); xa = V.alloc("xa"); ka = V.alloc("ka"); z = V.alloc("z", 2); self.r8 = r8 = V.alloc("r8")
        self.z = z
        a(f"s_getpc_b64 {sTP[0]}")
        a.label("L_PC")
        a(f"s_lshr_b32 {sJ}, s2, 3")
        a(f"s_and_b32 {sT[2]}, {sJ}, 7")
        a(f"s_lshl_b32 {sT[2]}, {sT[2]}, 12")
        a(f"v_and_b32 {pf}, 0x1f8, v0")
        a(f"v_lshl_add_u32 {pf}, {pf}, 3, {sT[2]}")
        a(f"v_min_u32 {pf}, L_END-L_PC-4, {pf}")
        a(f"global_load_dword {pf}, {pf}, {sTP[0]}")
        a(f"v_and_b32 {wa}, 31, v0")
        a(f"v_lshlrev_b32 {wa}, 4, {wa}")
        a(f"v_mov_b32 {z[0]}, 0")
        a(f"v_mov_b32 {z[1]}, 0")
        a(f"v_add_u32 {ka}, {MISC}, {wa}")
        a(f"ds_write_b64 {ka}, {z}")
        a(f"s_and_b32 {sT[3]}, s2, 7")
        a(f"s_lshl_b32 {sP}, {sT[3]}, 5")
        a(f"s_add_u32 {sP}, {sP}, {sJ}")
        a(f"s_lshr_b32 {sG}, {sP}, 1")
        a(f"v_lshrrev_b32 {r8}, 5, v0")
        a(f"s_lshl_b32 {sT[4]}, {sP}, 13")
        a(f"v_lshl_add_u32 {xa}, {r8}, 10, {wa}")
        a(f"v_add_u32 {xa}, {sT[4]}, {xa}")
        a(f"v_and_b32 {ka}, 0xff, v0")
        a(f"s_lshl_b32 {sT[5]}, {sG}, 10")
        a(f"v_lshl_add_u32 {ka}, {ka}, 2, {sT[5]}")
        a(f"s_lshl_b32 {sT[6]}, {sG}, 3")
        a(f"v_readfirstlane_b32 {sW}, {r8}")
        a(f"s_cmp_lt_u32 {sW}, 8")
        a("s_waitcnt lgkmcnt(0)")
        a("s_cbranch_scc0 L_KLD")
        a(f"global_load_dwordx4 {X[0:4]}, {xa}, {pU}")
        a(f"global_load_dwordx4 {X[4:8]}, {xa}, {pU} offset:512")
        a(f"s_load_dword {sE}, {pWS}, 0")
        a(f"global_load_dwordx4 {W[0:4]}, {wa}, {pWR}")
        a(f"global_load_dwordx4 {W[4:8]}, {wa}, {pWR} offset:512")
        a(f"s_load_dwordx2 {sDSK}, {pDSK}, {sT[6]}")
        a("s_branch L_LDD")
        a.label("L_KLD")
        for i, p in enumerate((pLA, pAI, pCR, pCI)):
            a(f"global_load_dword {W[4+i]}, {ka}, {p}")
        a(f"s_load_dwordx2 {sLDT}, {pLDT}, {sT[6]}")
        a.label("L_LDD")
        a("s_barrier")
        a(f"s_lshr_b32 {sW}, {sW}, 1")
        a(f"s_and_b32 {sPART}, {sJ}, 1")
        a(f"s_and_b32 {sC}, {sW}, 3")
        self.lane = lane = V.alloc("lane")
        self.l4 = l4 = V.alloc("l4")
        self.l16 = l16 = V.alloc("l16")
        a(f"v_and_b32 {lane}, 63, v0")
        a(f"v_lshlrev_b32 {l4}, 2, {lane}")
        a(f"v_lshlrev_b32 {l16}, 4, {lane}")
        V.release("xa", "ka")
        a(f"s_cmp_lt_u32 {sW}, 4")
        a("s_cbranch_scc0 L_KROLE")

    def dump_lds(self, tag):
        if self.dump == tag:
            self.a("s_branch L_DUMP")
            self.a.label(self.a.newlabel("L_dead"))

    def emit_dump(self):
        a = self.a
        a.label("L_DUMP")
        a("s_mov_b64 exec, -1")
        a("s_waitcnt vmcnt(0) lgkmcnt(0)")
        a("s_barrier")
        a("v_lshlrev_b32 v1, 4, v0")
        a(f"s_mul_i32 s50, s2, {LDS}")
        a(f"s_add_u32 s50, s50, {W_DUMP}")
        a("v_add_u32 v2, s50, v1")
        for i in range(20):
            a("ds_read_b128 v[4:7], v1")
            a("global_store_dwordx4 v2, v[4:7], s[32:33]")
            a("v_add_u32 v1, 0x2000, v1")
            a("v_add_u32 v2, 0x2000, v2")
        a("s_branch L_FIN")

    def finish(self):
        a = self.a
        a.label("L_FIN")
        if self.ts:
            if self.o.get("fw"): a("s_waitcnt vmcnt(0)")
            self.stamp(11)
            a("s_mov_b64 exec, -1")
            a("s_waitcnt lgkmcnt(0)")
            a("v_mov_b32 v1, 0")
            for i in range(12):
                a(f"v_writelane_b32 v1, {sTS[2*i]}, {i}")
            a(f"s_lshl_b32 s50, s2, 3")
            a(f"s_add_u32 s50, s50, {sW}")
            a(f"s_lshl_b32 s50, s50, 6")
            a(f"s_add_u32 s50, s50, {W_TS}")
            a("v_and_b32 v2, 63, v0")
            a("v_lshlrev_b32 v2, 2, v2")
            a("v_add_u32 v2, s50, v2")
            a("s_mov_b64 exec, 0xffff")
            a("global_store_dword v2, v1, s[32:33]")
            if self.o.get("dbg"):
                a(f"s_not_b32 s50, {sTS[0]}")
                a("v_writelane_b32 v1, s50, 12")
                a("v_and_b32 v2, 63, v0")
                a("v_lshlrev_b32 v2, 2, v2")
                a(f"s_cmp_lt_u32 {sW}, 4")
                a(f"s_cselect_b64 exec, {'0xffff, 0' if self.o['dbg'] == 'U' else '0, 0xffff'}")
                a("global_atomic_umax v2, v1, s[30:31]")
        a.label("L_EXIT")
        a("s_endpgm")
        a.label("L_END")

    def build(self):
        from gen3u import urole
        from gen3k import krole
        a = self.a
        a.label("L_BEGIN")
        self.prologue()
        snap = self.V.snapshot()
        urole(self)
        a("s_branch L_FIN")
        self.V.restore(snap)
        a.label("L_KROLE")
        krole(self)
        if self.dump:
            a("s_branch L_FIN")
            self.emit_dump()
        self.finish()
        body = a.text()
        ref = open(REF).read()
        head = ref[:ref.index(f"{NAME}_kernel:") + len(f"{NAME}_kernel:")]
        head = head.replace("; @launch grid=(4096,1,1) block=(256,1,1) lds=0", f"; @launch grid=(256,1,1) block=(512,1,1) lds={LDS}")
        foot = ref[ref.index('.section .rodata,"a"'):]
        nv = (self.V.high + 3) // 4 * 4
        foot = foot.replace(".amdhsa_next_free_vgpr 256", f".amdhsa_next_free_vgpr {nv}").replace(".amdhsa_accum_offset 256", f".amdhsa_accum_offset {nv}")
        return head + "\n" + body + "\n" + foot


if __name__ == "__main__":
    import argparse
    p = argparse.ArgumentParser()
    p.add_argument("-o", default=f"cdna_kernels/{NAME}.s")
    p.add_argument("--dump", default=None)
    p.add_argument("--ts", action="store_true")
    p.add_argument("--opt", action="append", default=[])
    g = p.parse_args()
    opts = dict((o.split("=") + ["1"])[:2] for o in g.opt)
    gen = Gen(g.dump, g.ts, opts)
    txt = gen.build()
    open(g.o, "w").write(txt)
    print("written", g.o, "vgprs", gen.V.high, "lines", txt.count("\n"))
```
